```python
import torch

def _softmax(x, axis=-1):
    return torch.softmax(x, dim=axis)
def _gelu(x):
    return torch.nn.functional.gelu(x, approximate="tanh")
def _silu(x):
    return torch.nn.functional.silu(x)
def _sigmoid(x):
    return torch.sigmoid(x)
def _layernorm(x, axis=-1, eps=1e-5):
    m = x.mean(dim=axis, keepdim=True)
    v = x.var(dim=axis, keepdim=True, unbiased=False)
    return (x - m) / torch.sqrt(v + eps)
def _scatter_add(tgt, idx, src, axis=0):
    return tgt.clone().index_add_(axis, idx, src)
def _segment_sum(src, seg, n):
    out = torch.zeros((n,) + src.shape[1:], dtype=src.dtype)
    return out.index_add_(0, seg, src)
def _pad(x, pw):
    flat = tuple(v for pair in reversed(pw) for v in pair)
    return torch.nn.functional.pad(x, flat)

kernel_name = 'gated_mix__sliding_block_cached__gqa_block_cached__decode'

def setup_inputs():

    _w = (lambda a: (lambda t: t.to(torch.bfloat16) if t.is_floating_point() else t)(torch.as_tensor(a)))
    def _A_setup():
        B, Sq, D = 2, 1, 576
        Hq, Hkv, Sk, Dh = 32, 16, 8192, 128
        assert Hq % Hkv == 0, (Hq, Hkv)
        return {
            "x": _w((lambda *s: torch.randn(*s, dtype=torch.bfloat16) * 0.05)(B, Sq, D)),
            "k_cache": _w((lambda *s: torch.randn(*s, dtype=torch.bfloat16) * 6.4)(B, Hkv, Sk, Dh)),
            "v_cache": _w((lambda *s: torch.randn(*s, dtype=torch.bfloat16) * 0.05)(B, Hkv, Sk, Dh)),
            "wq": _w((lambda *s: torch.randn(*s, dtype=torch.bfloat16) * 6.4)(D, Hq * Dh) * (D ** -0.5)),
            "wo": _w((lambda *s: torch.randn(*s, dtype=torch.bfloat16) * 0.05)(Hq * Dh, D) * ((Hq * Dh) ** -0.5)),
        }
    _A_in = _A_setup()

    def _B_setup():
        B, Sq, D = 2, 1, 576
        Hq, Hkv, Sk, Dh = 32, 16, 8192, 128
        assert Hq % Hkv == 0, (Hq, Hkv)
        return {
            "x": _w((lambda *s: torch.randn(*s, dtype=torch.bfloat16) * 0.05)(B, Sq, D)),
            "k_cache": _w((lambda *s: torch.randn(*s, dtype=torch.bfloat16) * 6.4)(B, Hkv, Sk, Dh)),
            "v_cache": _w((lambda *s: torch.randn(*s, dtype=torch.bfloat16) * 0.05)(B, Hkv, Sk, Dh)),
            "wq": _w((lambda *s: torch.randn(*s, dtype=torch.bfloat16) * 6.4)(D, Hq * Dh) * (D ** -0.5)),
            "wo": _w((lambda *s: torch.randn(*s, dtype=torch.bfloat16) * 0.05)(Hq * Dh, D) * ((Hq * Dh) ** -0.5)),
        }
    _B_in = _B_setup()

    return {
        "A_x": _A_in["x"],
        "A_k_cache": _A_in["k_cache"],
        "A_v_cache": _A_in["v_cache"],
        "A_wq": _A_in["wq"],
        "A_wo": _A_in["wo"],
        "B_x": _B_in["x"],
        "B_k_cache": _B_in["k_cache"],
        "B_v_cache": _B_in["v_cache"],
        "B_wq": _B_in["wq"],
        "B_wo": _B_in["wo"],
        "gate_w": _w((lambda *s: torch.randn(*s, dtype=torch.bfloat16) * 0.05)(576) * 16.0),
    }

def reference(A_x, A_k_cache, A_v_cache, A_wq, A_wo, B_x, B_k_cache, B_v_cache, B_wq, B_wo, gate_w):
    def _A_ref(x, k_cache, v_cache, wq, wo):
        B, Sq, D = x.shape
        Hq, Dh = 32, 128
        Hkv, Sk = k_cache.shape[1], k_cache.shape[2]
        W = min(4096, max(256, Sk // 4))
        rep = Hq // Hkv
        q = (lambda x, *d: x.permute(*d))((x @ wq).reshape(B, Sq, Hq, Dh), 0, 2, 1, 3)
        k = (lambda x, n, axis: torch.repeat_interleave(x, n, dim=axis))(k_cache[:, :, Sk - W:, :], rep, axis=1)
        v = (lambda x, n, axis: torch.repeat_interleave(x, n, dim=axis))(v_cache[:, :, Sk - W:, :], rep, axis=1)
        scores = torch.einsum("bhqd,bhkd->bhqk", q, k) * (Dh ** -0.5)
        p = _softmax(scores, axis=-1)
        o = torch.einsum("bhqk,bhkd->bhqd", p, v)
        return (lambda x, *d: x.permute(*d))(o, 0, 2, 1, 3).reshape(B, Sq, Hq * Dh) @ wo

    def _B_ref(x, k_cache, v_cache, wq, wo):
        B, Sq, D = x.shape
        Hq, Dh = 32, 128
        Hkv = k_cache.shape[1]
        rep = Hq // Hkv
        q = (lambda x, *d: x.permute(*d))((x @ wq).reshape(B, Sq, Hq, Dh), 0, 2, 1, 3)
        k = (lambda x, n, axis: torch.repeat_interleave(x, n, dim=axis))(k_cache, rep, axis=1)
        v = (lambda x, n, axis: torch.repeat_interleave(x, n, dim=axis))(v_cache, rep, axis=1)
        scores = torch.einsum("bhqd,bhkd->bhqk", q, k) * (Dh ** -0.5)
        p = _softmax(scores, axis=-1)
        o = torch.einsum("bhqk,bhkd->bhqd", p, v)
        return (lambda x, *d: x.permute(*d))(o, 0, 2, 1, 3).reshape(B, Sq, Hq * Dh) @ wo

    x = A_x
    g = _sigmoid((x * gate_w).sum(-1, keepdims=True))
    a = _A_ref(x, A_k_cache, A_v_cache, A_wq, A_wo)
    b = _B_ref(x, B_k_cache, B_v_cache, B_wq, B_wo)
    return g * a + (1 - g) * b
```

```python
import sys, json, math, struct

KNAME = "gated_mix__sliding_block_cached__gqa_block_cached__decode_kernel"
HEADER = open("gated_mix__sliding_block_cached__gqa_block_cached__decode.s.ref").read().split("; Override launch")[0]

def f32bits(x):
    return struct.unpack("<I", struct.pack("<f", x))[0]

Q0_OFF = 0
H1_OFF = 0x40000
H1_STRIDE = 1152
P2_OFF = 0x100000
P2_STRIDE = 4608
CNT_OFF = 0x280000
STAMP_OFF = 200 * 1024 * 1024
L_Q = 0
L_F = 1024
L_CNT = 1032
L_ML = 2048
L_ACC = 6144
LDS_BYTES = 6144 + 8192

SPIN = 1 << 17

class Gen:
    def __init__(self, stamps=False, NB=2, pads=None, RB=16, pollsleep=2):
        self.L = []
        self.stamps = stamps
        self.NB = NB
        self.pads = pads
        self.RB = RB
        self.pollsleep = pollsleep
        self.sites = []
    def a(self, s):
        for line in s.strip("\n").split("\n"):
            self.L.append("    " + line.strip() if not line.strip().endswith(":") else line.strip())
    def stamp(self, k):
        if self.stamps:
            self.a(f"s_memrealtime s[{72+2*k}:{73+2*k}]")
    def site(self, chain):
        n = len(self.sites)
        self.sites.append(chain)
        self.a(f"L_site{n}:")
        if isinstance(self.pads, dict):
            ch = self.pads.get(chain, [])
            if n in ch:
                i = ch.index(n)
                tgt = f"L_site{ch[i+1]}" if i + 1 < len(ch) else f"L_chain_done_{chain}"
                self.a(f"s_cbranch_execz {tgt}")
    def run_chain(self, chain):
        if isinstance(self.pads, dict) and self.pads.get(chain):
            self.a("s_mov_b64 exec, 0")
            self.a(f"s_branch L_site{self.pads[chain][0]}")
            self.a(f"L_chain_done_{chain}:")
            self.a("s_mov_b64 exec, -1")

    def prologue(self):
        a = self.a
        a("""
        s_cmp_ge_u32 s2, 256
        s_cbranch_scc1 L_end
        s_load_dwordx16 s[16:31], s[0:1], 0
        s_load_dwordx8 s[32:39], s[0:1], 64
        s_load_dwordx4 s[40:43], s[0:1], 96
        """)
        self.stamp(0)
        a("""
        v_lshrrev_b32 v2, 6, v0
        v_and_b32 v1, 63, v0
        v_readfirstlane_b32 s3, v2
        s_mov_b32 s46, 0x4000000
        s_mov_b32 s47, 0x20000
        s_mov_b64 s[50:51], s[46:47]
        s_mov_b64 s[54:55], s[46:47]
        s_mov_b64 s[58:59], s[46:47]
        s_mov_b32 s62, 0x480000
        s_mov_b32 s63, 0x20000
        s_mov_b64 s[66:67], s[62:63]
        s_lshr_b32 s4, s2, 7
        s_lshr_b32 s7, s2, 3
        s_and_b32 s5, s7, 15
        s_and_b32 s6, s2, 7
        s_lshr_b32 s8, s6, 2
        s_and_b32 s9, s6, 3
        v_lshrrev_b32 v2, 4, v1
        v_and_b32 v3, 15, v1
        """)
        a(f"s_mov_b32 s10, 0x{f32bits(math.log2(math.e) / math.sqrt(128.0)):08x}")
        a("""
        v_and_b32 v8, 1, v1
        v_lshlrev_b32 v8, 4, v8
        v_mov_b32 v9, 0xffff
        v_lshlrev_b32 v8, v8, v9
        v_bfe_u32 v9, v1, 1, 2
        v_cmp_eq_u32 vcc, 0, v9
        v_cmp_eq_u32 s[12:13], 1, v9
        v_cmp_eq_u32 s[14:15], 2, v9
        v_cndmask_b32 v4, 0, v8, vcc
        v_cmp_eq_u32 vcc, 3, v9
        v_cndmask_b32 v5, 0, v8, s[12:13]
        v_cndmask_b32 v6, 0, v8, s[14:15]
        v_cndmask_b32 v7, 0, v8, vcc
        s_cmp_eq_u32 s4, 0
        s_waitcnt lgkmcnt(0)
        s_cselect_b64 s[60:61], s[22:23], s[32:33]
        s_cselect_b64 s[64:65], s[24:25], s[34:35]
        s_mov_b64 s[44:45], s[18:19]
        s_mov_b64 s[48:49], s[20:21]
        s_mov_b64 s[52:53], s[28:29]
        s_mov_b64 s[56:57], s[30:31]
        s_cmp_ge_u32 s3, 3
        s_cbranch_scc1 L_stream
        s_cmp_eq_u32 s3, 1
        s_cbranch_scc1 L_h1
        s_cmp_eq_u32 s3, 2
        s_cbranch_scc1 L_h2
        """)

    def spin_init(self, s):
        self.a(f"s_mov_b32 s{s}, {SPIN}")
    def spin_check(self, s, loop):
        self.a(f"""
        s_sub_u32 s{s}, s{s}, 1
        s_cmp_lg_u32 s{s}, 0
        s_cbranch_scc1 {loop}
        """)

    def all_flags(self, tag):
        a = self.a
        a("v_lshlrev_b32 v8, 2, v1")
        a("s_mov_b32 s12, 0x01010101")
        self.spin_init(11)
        a(f"L_af_{tag}:")
        a(f"""
        global_load_dword v9, v8, s[40:41] sc1
        s_waitcnt vmcnt(0)
        v_cmp_ne_u32 vcc, s12, v9
        s_cbranch_vccz L_afd_{tag}
        s_sleep 8
        """)
        self.spin_check(11, f"L_af_{tag}")
        a(f"L_afd_{tag}:")

    def h0(self):
        a = self.a
        a("""
        v_lshrrev_b32 v8, 3, v3
        v_mul_u32_u24 v8, 1152, v8
        v_mul_u32_u24 v9, 72, v2
        s_mul_i32 s11, s9, 288
        v_add3_u32 v8, v8, v9, s11
        v_mul_u32_u24 v9, 0x48000, v2
        v_lshl_add_u32 v9, v3, 4, v9
        s_mul_i32 s11, s9, 0x120000
        s_lshl_b32 s12, s5, 9
        s_lshl_b32 s13, s8, 8
        s_add_u32 s11, s11, s12
        s_add_u32 s11, s11, s13
        global_load_dwordx4 v[16:19], v8, s[16:17]
        global_load_dwordx4 v[20:23], v8, s[16:17] offset:16
        global_load_dwordx4 v[24:27], v8, s[16:17] offset:32
        global_load_dwordx4 v[28:31], v8, s[16:17] offset:48
        global_load_dwordx2 v[32:33], v8, s[16:17] offset:64
        """)
        for t in range(36):
            a(f"buffer_load_dwordx4 v[{64+4*t}:{67+4*t}], v9, s[60:63], s11 offen nt")
            if t < 35:
                a("s_addk_i32 s11, 0x2000")
        a(f"""
        v_mov_b32 v48, -1
        v_mov_b32 v49, -1
        v_mov_b32 v50, -1
        v_mov_b32 v51, -1
        s_mul_i32 s12, s2, {H1_STRIDE}
        s_add_u32 s12, s12, {H1_OFF}
        v_lshl_add_u32 v52, v1, 4, s12
        v_add_u32 v53, {256*H1_STRIDE}, v52
        v_mov_b32 v54, s12
        v_add_u32 v55, {256*H1_STRIDE}, v54
        s_mul_i32 s12, s2, {P2_STRIDE}
        s_add_u32 s12, s12, {P2_OFF}
        v_lshl_add_u32 v56, v1, 4, s12
        global_store_dwordx4 v52, v[48:51], s[42:43] sc1
        global_store_dwordx4 v53, v[48:51], s[42:43] sc1
        global_store_dwordx4 v54, v[48:51], s[42:43] offset:1024 sc1
        global_store_dwordx4 v55, v[48:51], s[42:43] offset:1024 sc1
        global_store_dwordx4 v56, v[48:51], s[42:43] sc1
        global_store_dwordx4 v56, v[48:51], s[42:43] offset:1024 sc1
        global_store_dwordx4 v56, v[48:51], s[42:43] offset:2048 sc1
        global_store_dwordx4 v56, v[48:51], s[42:43] offset:3072 sc1
        global_store_dwordx4 v56, v[48:51], s[42:43] offset:3584 sc1
        s_mov_b32 s12, 0x01000100
        s_mov_b32 s13, 0x03020302
        """)
        NST = 9
        a(f"s_waitcnt vmcnt({36+NST})")
        self.stamp(1)
        for t in range(36):
            if t % 6 == 0:
                self.site("h")
            A = 40 + 4 * (t % 2)
            a(f"v_perm_b32 v34, v{16+t//2}, v{16+t//2}, s{12+(t%2)}")
            for r in range(4):
                a(f"v_and_b32 v{A+r}, v34, v{4+r}")
            a(f"s_waitcnt vmcnt({35-t+NST})")
            a("s_nop 0")
            c = "0" if t == 0 else "v[36:39]"
            a(f"v_mfma_f32_16x16x32_bf16 v[36:39], v[{A}:{A+3}], v[{64+4*t}:{67+4*t}], {c}")
        self.site("h")
        a(f"""
        s_lshl_b32 s12, s5, 4
        s_lshl_b32 s13, s4, 3
        s_add_u32 s12, s12, s13
        s_add_u32 s14, s12, s6
        s_lshl_b32 s13, s14, 10
        v_lshl_add_u32 v8, v1, 4, s13
        v_mov_b32 v9, s14
        v_mov_b32 v10, 1
        s_lshl_b32 s13, s5, 4
        v_mov_b32 v11, s13
        global_store_dwordx4 v8, v[36:39], s[42:43] sc1
        s_waitcnt vmcnt(0)
        global_store_byte v9, v10, s[40:41] sc1
        """)
        self.stamp(2)
        a(f"""
        v_lshrrev_b32 v8, 5, v1
        v_lshlrev_b32 v8, 12, v8
        v_and_b32 v9, 31, v1
        v_lshl_add_u32 v8, v9, 4, v8
        s_lshl_b32 s13, s5, 14
        s_lshl_b32 s14, s4, 9
        s_add_u32 s13, s13, s14
        v_add_u32 v8, s13, v8
        v_add_u32 v12, 8192, v8
        s_mov_b32 s12, 0x01010101
        """)
        self.spin_init(11)
        a("L_pq:")
        a(f"""
        global_load_dwordx4 v[16:19], v11, s[40:41] sc1
        s_waitcnt vmcnt(0)
        v_and_b32 v16, v16, v17
        v_and_b32 v18, v18, v19
        v_and_b32 v16, v16, v18
        v_cmp_ne_u32 vcc, s12, v16
        s_cbranch_vccz L_pqd
        s_sleep {self.pollsleep}
        """)
        self.spin_check(11, "L_pq")
        a("L_pqd:")
        self.stamp(3)
        for br in range(2):
            for qd in range(4):
                r = 64 + 16 * br + 4 * qd
                a(f"global_load_dwordx4 v[{r}:{r+3}], v{8 if br == 0 else 12}, s[42:43] offset:{qd*1024} sc1")
        a("""
        v_lshrrev_b32 v9, 5, v1
        v_lshlrev_b32 v9, 8, v9
        v_lshl_add_u32 v9, v3, 4, v9
        v_and_b32 v10, 1, v2
        v_lshl_add_u32 v9, v10, 3, v9
        """)
        for br in range(2):
            r = 64 + 16 * br
            a(f"s_waitcnt vmcnt({4 if br == 0 else 0})")
            for k in range(4):
                a(f"v_add_f32 v{r+k}, v{r+k}, v{r+4+k}")
                a(f"v_add_f32 v{r+8+k}, v{r+8+k}, v{r+12+k}")
            for k in range(4):
                a(f"v_add_f32 v{r+k}, v{r+k}, v{r+8+k}")
            a(f"v_cvt_pk_bf16_f32 v{r}, v{r}, v{r+1}")
            a(f"v_cvt_pk_bf16_f32 v{r+1}, v{r+2}, v{r+3}")
            a(f"ds_write_b64 v9, v[{r}:{r+1}] offset:{L_Q + br*512}")
        a("s_waitcnt lgkmcnt(0)")
        a("s_barrier")
        self.stamp(4)
        self.all_flags("h0")
        a(f"""
        v_lshrrev_b32 v8, 3, v3
        v_lshl_add_u32 v54, v8, 3, v54
        v_lshlrev_b32 v57, 4, v1
        v_lshlrev_b32 v58, 3, v1
        v_mov_b32 v59, {L_CNT}
        s_mov_b32 s68, 0
        """)
        a("""
        s_and_b32 s12, s2, 0xc0
        s_lshl_b32 s13, s6, 3
        s_and_b32 s14, s7, 7
        s_or_b32 s12, s12, s13
        s_or_b32 s69, s12, s14
        """)
        self.hop2_setup()
        self.spin_init(11)
        a("L_wa:")
        a("""
        ds_read_b32 v8, v59
        s_waitcnt lgkmcnt(0)
        v_cmp_ne_u32 vcc, 4, v8
        s_cbranch_vccz L_comb
        s_sleep 8
        """)
        self.spin_check(11, "L_wa")
        a("L_comb:")
        self.site("t")
        for s in range(4):
            a(f"ds_read_b64 v[{16+2*s}:{17+2*s}], v58 offset:{L_ML + s*512}")
        for s in range(4):
            a(f"ds_read_b128 v[{24+4*s}:{27+4*s}], v57 offset:{L_ACC + s*1024}")
        a("""
        s_waitcnt lgkmcnt(4)
        v_max3_f32 v40, v16, v18, v20
        v_max_f32 v40, v40, v22
        v_sub_f32 v16, v16, v40
        v_sub_f32 v18, v18, v40
        v_sub_f32 v20, v20, v40
        v_sub_f32 v22, v22, v40
        v_exp_f32 v16, v16
        v_exp_f32 v18, v18
        v_exp_f32 v20, v20
        v_exp_f32 v22, v22
        s_waitcnt lgkmcnt(0)
        """)
        for k in range(4):
            a(f"v_mul_f32 v{24+k}, v{24+k}, v16")
        for s in range(1, 4):
            for k in range(4):
                a(f"v_fmac_f32 v{24+k}, v{24+4*s+k}, v{16+2*s}")
        a("v_mul_f32 v41, v17, v16")
        for k in range(4):
            a(f"v_min_u32 v{24+k}, -2, v{24+k}")
        a("""
        global_store_dwordx4 v52, v[24:27], s[42:43] sc1
        v_fmac_f32 v41, v19, v18
        v_fmac_f32 v41, v21, v20
        v_fmac_f32 v41, v23, v22
        v_min_u32 v40, -2, v40
        v_mov_b32 v42, v41
        s_nop 1
        v_permlane32_swap_b32 v42, v41
        v_add_f32 v41, v41, v42
        v_mov_b32 v42, v41
        s_nop 1
        v_permlane16_swap_b32 v42, v41
        v_add_f32 v41, v41, v42
        v_min_u32 v41, -2, v41
        global_store_dwordx2 v54, v[40:41], s[42:43] offset:1024 sc1
        s_cmp_lg_u32 s68, 0
        s_cbranch_scc1 L_hop2
        s_mov_b32 s68, 1
        """)
        self.stamp(5)
        a(f"""
        v_add_u32 v52, {256*H1_STRIDE}, v52
        v_add_u32 v54, {256*H1_STRIDE}, v54
        v_add_u32 v57, 4096, v57
        v_add_u32 v58, 2048, v58
        s_barrier
        s_branch L_comb
        """)

    def hop2_setup(self):
        a = self.a
        a(f"""
        s_lshl_b32 s12, s69, 4
        s_add_u32 s12, s12, {P2_OFF}
        v_mul_u32_u24 v60, {P2_STRIDE}, v1
        v_add_u32 v60, s12, v60
        v_add_u32 v61, {64*P2_STRIDE}, v60
        v_add_u32 v62, {128*P2_STRIDE}, v60
        v_add_u32 v63, {192*P2_STRIDE}, v60
        s_lshl_b32 s12, s69, 3
        v_lshl_add_u32 v46, v2, 1, s12
        """)

    def hop2(self):
        a = self.a
        a("L_hop2:")
        self.stamp(6)
        self.spin_init(11)
        a("L_p2:")
        self.site("t")
        for k in range(4):
            a(f"global_load_dwordx4 v[{64+4*k}:{67+4*k}], v{60+k}, s[42:43] sc1")
        a("s_waitcnt vmcnt(0)")
        a("v_max3_u32 v8, v64, v65, v66")
        a("v_max3_u32 v9, v67, v68, v69")
        a("v_max3_u32 v10, v70, v71, v72")
        a("v_max3_u32 v8, v8, v73, v74")
        a("v_max3_u32 v9, v9, v75, v76")
        a("v_max3_u32 v10, v10, v77, v78")
        a("v_max3_u32 v8, v8, v9, v79")
        a("v_max_u32 v8, v8, v10")
        a("v_cmp_eq_u32 vcc, -1, v8")
        a("s_cbranch_vccz L_p2d")
        self.spin_check(11, "L_p2")
        a("L_p2d:")
        for k in range(4):
            a(f"v_add_f32 v{64+k}, v{64+k}, v{68+k}")
        for k in range(4):
            a(f"v_add_f32 v{72+k}, v{72+k}, v{76+k}")
        for k in range(4):
            a(f"v_add_f32 v{64+k}, v{64+k}, v{72+k}")
        a("""
        s_nop 0
        v_permlane32_swap_b32 v64, v66
        v_permlane32_swap_b32 v65, v67
        v_add_f32 v64, v64, v66
        v_add_f32 v65, v65, v67
        s_nop 1
        v_permlane16_swap_b32 v64, v65
        v_add_f32 v64, v64, v65
        s_nop 1
        v_add_f32_dpp v64, v64, v64 quad_perm:[1,0,3,2] row_mask:0xf bank_mask:0xf
        s_nop 1
        v_add_f32_dpp v64, v64, v64 quad_perm:[2,3,0,1] row_mask:0xf bank_mask:0xf
        s_nop 1
        v_add_f32_dpp v64, v64, v64 row_half_mirror row_mask:0xf bank_mask:0xf
        s_nop 1
        v_add_f32_dpp v64, v64, v64 row_mirror row_mask:0xf bank_mask:0xf
        s_mov_b32 s12, 0x00010001
        s_mov_b32 s13, 0x00010001
        v_cvt_pk_bf16_f32 v64, v64, v64
        s_mov_b64 exec, s[12:13]
        global_store_short v46, v64, s[38:39]
        """)
        self.stamp(7)
        a("s_branch L_fin")

    def h2(self):
        a = self.a
        a("L_h2:")
        a(f"""
        v_mov_b32 v8, {L_CNT}
        v_mov_b32 v9, 0
        ds_write_b32 v8, v9
        """)
        self.run_chain("h")
        self.run_chain("t")
        a("s_add_u32 s69, s2, 256")
        self.hop2_setup()
        a("s_waitcnt lgkmcnt(0)")
        a("s_barrier")
        a("s_cmp_ge_u32 s2, 32")
        a("s_cbranch_scc1 L_fin")
        self.all_flags("h2")
        a("s_barrier")
        a("s_branch L_hop2")

    def h1(self):
        a = self.a
        a("L_h1:")
        a("""
        v_and_b32 v8, 31, v1
        v_mul_u32_u24 v8, 36, v8
        v_lshrrev_b32 v9, 5, v1
        v_mul_u32_u24 v10, 1152, v9
        v_add_u32 v10, v10, v8
        global_load_dwordx4 v[16:19], v10, s[16:17]
        global_load_dwordx4 v[20:23], v10, s[16:17] offset:16
        global_load_dword v24, v10, s[16:17] offset:32
        global_load_dwordx4 v[28:31], v8, s[36:37]
        global_load_dwordx4 v[32:35], v8, s[36:37] offset:16
        global_load_dword v36, v8, s[36:37] offset:32
        v_mov_b32 v40, 0
        v_mov_b32 v41, 0
        s_waitcnt vmcnt(0)
        """)
        for k in range(9):
            x, w = 16 + k, 28 + k
            a(f"""
            v_lshlrev_b32 v42, 16, v{x}
            v_and_b32 v43, 0xffff0000, v{x}
            v_lshlrev_b32 v44, 16, v{w}
            v_and_b32 v45, 0xffff0000, v{w}
            v_mul_f32 v42, v42, v44
            v_mul_f32 v43, v43, v45
            v_cvt_pk_bf16_f32 v42, v42, v43
            v_and_b32 v43, 0xffff0000, v42
            v_lshlrev_b32 v42, 16, v42
            v_add_f32 v41, v41, v43
            v_add_f32 v40, v40, v42
            """)
        a(f"""
        v_add_f32 v40, v40, v41
        s_nop 1
        v_add_f32_dpp v40, v40, v40 quad_perm:[1,0,3,2] row_mask:0xf bank_mask:0xf
        s_nop 1
        v_add_f32_dpp v40, v40, v40 quad_perm:[2,3,0,1] row_mask:0xf bank_mask:0xf
        s_nop 1
        v_add_f32_dpp v40, v40, v40 row_half_mirror row_mask:0xf bank_mask:0xf
        s_nop 1
        v_add_f32_dpp v40, v40, v40 row_mirror row_mask:0xf bank_mask:0xf
        s_nop 0
        v_mov_b32 v41, v40
        s_nop 1
        v_permlane16_swap_b32 v41, v40
        v_add_f32 v40, v40, v41
        v_cvt_pk_bf16_f32 v40, v40, v40
        v_lshlrev_b32 v40, 16, v40
        v_mul_f32 v40, 0x{f32bits(-math.log2(math.e)):08x}, v40
        v_exp_f32 v40, v40
        s_nop 0
        v_add_f32 v40, 1.0, v40
        v_rcp_f32 v40, v40
        s_nop 0
        v_cvt_pk_bf16_f32 v40, v40, v40
        v_lshlrev_b32 v40, 16, v40
        v_sub_f32 v41, 1.0, v40
        v_cvt_pk_bf16_f32 v41, v41, v41
        v_lshlrev_b32 v41, 16, v41
        s_cmp_eq_u32 s4, 0
        s_cselect_b64 s[12:13], 0, -1
        v_lshlrev_b32 v9, 2, v9
        v_cndmask_b32 v40, v40, v41, s[12:13]
        ds_write_b32 v9, v40 offset:{L_F}
        s_waitcnt lgkmcnt(0)
        s_barrier
        s_mov_b32 s15, 4
        """)
        self.wo_setup()
        a("s_mov_b32 s12, 0x00ff00ff")
        a("s_mov_b32 s13, 0x00ff00ff")
        a("s_mov_b64 exec, s[12:13]")
        self.wo_loads()
        a("s_mov_b64 exec, -1")
        a("s_branch L_barx")

    def wo_setup(self):
        a = self.a
        a(f"""
        v_mul_u32_u24 v48, 2304, v2
        v_lshl_add_u32 v48, v3, 4, v48
        s_lshl_b32 s12, s5, 8
        s_lshl_b32 s13, s6, 5
        s_add_u32 s12, s12, s13
        s_mul_i32 s70, s12, 1152
        s_lshl_b32 s12, s15, 8
        s_add_u32 s70, s70, s12
        v_lshrrev_b32 v53, 3, v3
        v_and_b32 v54, 7, v1
        v_lshl_add_u32 v54, v53, 7, v54
        v_mul_u32_u24 v54, {H1_STRIDE}, v54
        s_lshl_b32 s12, s4, 8
        s_lshl_b32 s13, s5, 3
        s_add_u32 s12, s12, s13
        s_mul_i32 s12, s12, {H1_STRIDE}
        s_add_u32 s12, s12, {H1_OFF}
        s_lshl_b32 s13, s8, 3
        s_add_u32 s13, s13, s12
        v_add_u32 v50, s13, v54
        s_lshl_b32 s13, s9, 8
        s_add_u32 s12, s12, s13
        s_lshl_b32 s13, s8, 7
        s_add_u32 s12, s12, s13
        v_lshl_add_u32 v49, v2, 5, v54
        v_add_u32 v49, s12, v49
        v_lshlrev_b32 v53, 2, v53
        ds_read_b32 v52, v53 offset:{L_F}
        v_lshrrev_b32 v53, 1, v2
        v_mul_u32_u24 v53, 2304, v53
        v_lshl_add_u32 v53, v3, 5, v53
        v_and_b32 v54, 1, v2
        v_lshl_add_u32 v53, v54, 4, v53
        s_mul_i32 s12, s2, {P2_STRIDE}
        s_lshl_b32 s13, s15, 9
        s_add_u32 s12, s12, s13
        s_add_u32 s12, s12, {P2_OFF}
        v_add_u32 v51, s12, v53
        """)

    def wo_loads(self):
        a = self.a
        for r in range(4):
            for u in range(2):
                t = u * 4 + r
                a(f"buffer_load_dwordx4 v[{64+4*t}:{67+4*t}], v48, s[64:67], s70 offen offset:{u*1152} nt")
            if r < 3:
                a(f"s_addk_i32 s70, {8*1152}")

    def wo_phase(self):
        a = self.a
        a("L_barx:")
        a("s_barrier")
        self.stamp(5)
        self.spin_init(11)
        a("L_p1:")
        self.site("s")
        a("""
        global_load_dwordx2 v[104:105], v50, s[42:43] offset:1024 sc1
        global_load_dwordx4 v[96:99], v49, s[42:43] sc1
        global_load_dwordx4 v[100:103], v49, s[42:43] offset:16 sc1
        s_waitcnt vmcnt(0)
        v_max3_u32 v8, v96, v97, v98
        v_max3_u32 v9, v99, v100, v101
        v_max3_u32 v8, v8, v102, v103
        v_max3_u32 v9, v9, v104, v105
        v_max_u32 v8, v8, v9
        v_cmp_eq_u32 vcc, -1, v8
        s_cbranch_vccz L_p1d
        """)
        self.spin_check(11, "L_p1")
        a("L_p1d:")
        self.stamp(6)
        D1 = "quad_perm:[1,0,3,2] row_mask:0xf bank_mask:0xf"
        D2 = "quad_perm:[2,3,0,1] row_mask:0xf bank_mask:0xf"
        D3 = "row_half_mirror row_mask:0xf bank_mask:0xf"
        a(f"""
        v_max_f32_dpp v8, v104, v104 {D1}
        s_nop 1
        v_max_f32_dpp v8, v8, v8 {D2}
        s_nop 1
        v_max_f32_dpp v8, v8, v8 {D3}
        v_sub_f32 v8, v104, v8
        v_exp_f32 v8, v8
        s_waitcnt lgkmcnt(0)
        v_mul_f32 v105, v105, v8
        """)
        for t in range(8):
            a(f"v_mul_f32 v{96+t}, v{96+t}, v8")
        for D in (D1, D2, D3):
            a(f"v_add_f32_dpp v105, v105, v105 {D}")
            if D is D3:
                a("v_rcp_f32 v105, v105")
            for t in range(8):
                a(f"v_add_f32_dpp v{96+t}, v{96+t}, v{96+t} {D}")
        a("v_mul_f32 v105, v105, v52")
        for t in range(8):
            a(f"v_mul_f32 v{96+t}, v{96+t}, v105")
        for t in range(8):
            A = 24 + 4 * (t % 2)
            a(f"v_cvt_pk_bf16_f32 v{96+t}, v{96+t}, v{96+t}")
            for r in range(4):
                a(f"v_and_b32 v{A+r}, v{96+t}, v{4+r}")
            a("s_nop 1")
            c = "0" if t == 0 else "v[20:23]"
            a(f"v_mfma_f32_16x16x32_bf16 v[20:23], v[{A}:{A+3}], v[{64+4*t}:{67+4*t}], {c}")
        a("""
        s_mov_b32 s12, 0x00ff00ff
        s_mov_b32 s13, 0x00ff00ff
        s_cmp_eq_u32 s15, 4
        s_cselect_b64 s[12:13], s[12:13], -1
        s_nop 4
        v_min_u32 v20, -2, v20
        v_min_u32 v21, -2, v21
        v_min_u32 v22, -2, v22
        v_min_u32 v23, -2, v23
        s_mov_b64 exec, s[12:13]
        global_store_dwordx4 v51, v[20:23], s[42:43] sc1
        """)
        self.stamp(7)
        a("s_branch L_fin")

    def kloads(self, r, srd, so):
        for i in range(4):
            self.a(f"buffer_load_dwordx4 v[{r+4*i}:{r+4*i+3}], v8, s[{srd}:{srd+3}], s{so} offen offset:{i*64} nt")
    def vloads(self, r, srd, so):
        for i in range(4):
            self.a(f"buffer_load_dwordx4 v[{r+4*i}:{r+4*i+3}], v9, s[{srd}:{srd+3}], s{so} offen offset:{i*256} nt")

    def qk(self, r):
        for i in range(4):
            c = "0" if i == 0 else "v[16:19]"
            self.a(f"v_mfma_f32_16x16x32_bf16 v[16:19], v[{r+4*i}:{r+4*i+3}], v[{32+4*i}:{35+4*i}], {c}")

    def softmax(self):
        self.a("""
        v_max3_f32 v13, v16, v17, v18
        v_max3_f32 v13, v13, v19, v12
        v_mov_b32 v14, v13
        s_nop 1
        v_permlane32_swap_b32 v14, v13
        v_max_f32 v13, v13, v14
        v_mov_b32 v14, v13
        s_nop 1
        v_permlane16_swap_b32 v14, v13
        v_max_f32 v12, v13, v14
        v_mul_f32 v13, s10, v12
        v_sub_f32 v15, v10, v13
        v_fma_f32 v16, v16, s10, -v13
        v_fma_f32 v17, v17, s10, -v13
        v_fma_f32 v18, v18, s10, -v13
        v_fma_f32 v19, v19, s10, -v13
        v_exp_f32 v15, v15
        v_exp_f32 v16, v16
        v_exp_f32 v17, v17
        v_exp_f32 v18, v18
        v_exp_f32 v19, v19
        v_mov_b32 v10, v13
        v_mul_f32 v20, v20, v15
        v_mul_f32 v21, v21, v15
        v_mul_f32 v22, v22, v15
        v_mul_f32 v23, v23, v15
        v_fma_f32 v11, v11, v15, v16
        v_add_f32 v13, v17, v18
        v_add_f32 v11, v11, v19
        v_cvt_pk_bf16_f32 v16, v16, v16
        v_cvt_pk_bf16_f32 v17, v17, v17
        v_cvt_pk_bf16_f32 v18, v18, v18
        v_cvt_pk_bf16_f32 v19, v19, v19
        v_add_f32 v11, v11, v13
        """)
    def pv(self, r, wait):
        a = self.a
        for k in range(4): a(f"v_and_b32 v{24+k}, v16, v{4+k}")
        for k in range(4): a(f"v_and_b32 v{28+k}, v17, v{4+k}")
        a(f"s_waitcnt vmcnt({wait})")
        a(f"v_mfma_f32_16x16x32_bf16 v[20:23], v[{r}:{r+3}], v[24:27], v[20:23]")
        a(f"v_mfma_f32_16x16x32_bf16 v[20:23], v[{r+4}:{r+7}], v[28:31], v[20:23]")
        for k in range(4): a(f"v_and_b32 v{24+k}, v18, v{4+k}")
        for k in range(4): a(f"v_and_b32 v{28+k}, v19, v{4+k}")
        a(f"v_mfma_f32_16x16x32_bf16 v[20:23], v[{r+8}:{r+11}], v[24:27], v[20:23]")
        a("s_nop 0")
        a(f"v_mfma_f32_16x16x32_bf16 v[20:23], v[{r+12}:{r+15}], v[28:31], v[20:23]")

    def state_init(self):
        self.a(f"""
        v_mov_b32 v12, 0x{f32bits(-1e30):08x}
        v_mov_b32 v10, 0x{f32bits(-1e29):08x}
        v_mov_b32 v11, 0
        v_mov_b32 v20, 0
        v_mov_b32 v21, 0
        v_mov_b32 v22, 0
        v_mov_b32 v23, 0
        """)

    def stream(self):
        a = self.a
        NB = self.NB
        RS = 32 * 4096
        ring = 256 - 32 * NB
        a("L_stream:")
        a("""
        s_sub_u32 s15, s3, 3
        v_lshlrev_b32 v8, 8, v3
        v_lshl_add_u32 v8, v2, 4, v8
        v_lshlrev_b32 v9, 10, v2
        v_lshl_add_u32 v9, v3, 4, v9
        s_lshl_b32 s12, s6, 2
        s_add_u32 s12, s12, s15
        s_lshl_b32 s12, s12, 12
        s_lshl_b32 s13, s7, 21
        s_add_u32 s68, s12, s13
        s_add_u32 s69, s13, 0x200000
        s_add_u32 s12, s68, 0x180000
        """)
        for c in range(4):
            self.kloads(64 + 32 * c, 44, 12)
            self.vloads(80 + 32 * c, 48, 12)
            if c < 3:
                a(f"s_add_u32 s12, s12, {RS}")
        for b in range(NB):
            self.kloads(ring + 32 * b, 52, 68)
            self.vloads(ring + 16 + 32 * b, 56, 68)
            if b < NB - 1:
                a(f"s_add_u32 s68, s68, {RS}")
        self.stamp(1)
        self.run_chain("s")
        a(f"""
        v_lshrrev_b32 v55, 3, v3
        v_lshlrev_b32 v55, 8, v55
        v_lshl_add_u32 v55, v2, 4, v55
        s_lshl_b32 s12, s15, 10
        v_lshl_add_u32 v56, v1, 4, s12
        s_lshl_b32 s12, s15, 9
        v_lshl_add_u32 v57, v1, 3, s12
        v_mov_b32 v58, {L_CNT}
        v_mov_b32 v59, 1
        s_mov_b32 s71, {NB}
        s_mov_b32 s14, 0
        """)
        self.state_init()
        a("s_barrier")
        self.stamp(2)
        for i in range(4):
            a(f"ds_read_b128 v[{32+4*i}:{35+4*i}], v55 offset:{L_Q + 64*i}")
        self.wo_setup()
        a("s_waitcnt lgkmcnt(0)")
        tot = 32 + 8 * NB
        for c in range(4):
            self.site("s")
            a(f"s_waitcnt vmcnt({tot - 8*c - 4})")
            self.qk(64 + 32 * c)
            if c == 3:
                for i in range(4):
                    a(f"ds_read_b128 v[{32+4*i}:{35+4*i}], v55 offset:{L_Q + 512 + 64*i}")
                a("s_nop 3")
            else:
                a("s_nop 7")
            self.softmax()
            self.pv(80 + 32 * c, tot - 8 * c - 8)
        a(f"""
        s_nop 7
        ds_write_b64 v57, v[10:11] offset:{L_ML}
        ds_write_b128 v56, v[20:23] offset:{L_ACC}
        s_waitcnt lgkmcnt(0)
        s_mov_b64 exec, 1
        ds_add_u32 v58, v59
        s_mov_b64 exec, -1
        """)
        self.state_init()
        self.stamp(3)
        W = 8 * NB - 4
        a("L_loop:")
        for b in range(NB):
            r = ring + 32 * b
            self.site("s")
            a(f"s_waitcnt vmcnt({W})")
            self.qk(r)
            a(f"""
            s_add_u32 s68, s68, {RS}
            s_cmp_lt_u32 s68, s69
            s_cbranch_scc0 L_exh{b}
            L_kl{b}:
            """)
            self.kloads(r, 52, 68)
            a("s_nop 0")
            a(f"L_sm{b}:")
            self.softmax()
            self.pv(r + 16, W)
            a(f"""
            s_cmp_eq_u32 s14, 1
            s_cbranch_scc1 L_nov{b}
            """)
            self.vloads(r + 16, 56, 68)
            a(f"""
            L_nov{b}:
            s_mov_b32 s14, 0
            s_cmp_eq_u32 s71, 0
            s_cbranch_scc1 L_done
            """)
        a("s_branch L_loop")
        for b in range(NB):
            a(f"""
            L_exh{b}:
            s_mov_b32 s68, 0x80000000
            s_sub_u32 s71, s71, 1
            s_cmp_lg_u32 s71, {NB-1}
            s_cbranch_scc1 L_kl{b}
            s_mov_b32 s14, 1
            """)
            self.wo_loads()
            a(f"s_branch L_sm{b}")
        a("L_done:")
        self.site("s")
        self.stamp(4)
        a(f"""
        s_nop 5
        ds_write_b64 v57, v[10:11] offset:{L_ML + 2048}
        ds_write_b128 v56, v[20:23] offset:{L_ACC + 4096}
        s_waitcnt lgkmcnt(0)
        """)

    def fin(self):
        a = self.a
        a("L_fin:")
        if self.stamps:
            a(f"""
            s_mov_b64 exec, 1
            s_lshl_b32 s12, s2, 3
            s_add_u32 s12, s12, s3
            s_lshl_b32 s12, s12, 6
            s_add_u32 s12, s12, {STAMP_OFF}
            v_mov_b32 v1, s12
            s_waitcnt lgkmcnt(0)
            """)
            for k in range(8):
                a(f"v_mov_b32 v2, s{72+2*k}")
                a(f"v_mov_b32 v3, s{73+2*k}")
                a(f"global_store_dwordx2 v1, v[2:3], s[42:43] offset:{8*k}")
                a("s_nop 1")
        a("L_end:")
        a("s_endpgm")

    def build(self):
        L = self.L
        L.append(HEADER.rstrip("\n"))
        L.append(f"; @launch grid=(256,1,1) block=(448,1,1) lds={LDS_BYTES}")
        L.append('.amdgcn_target "amdgcn-amd-amdhsa--gfx950"')
        L.append(".text")
        L.append(f".globl {KNAME}")
        L.append(".p2align 8")
        L.append(f".type {KNAME},@function")
        L.append(f"{KNAME}:")
        if self.stamps:
            for k in range(8):
                self.a(f"s_mov_b64 s[{72+2*k}:{73+2*k}], 0")
        self.prologue()
        self.h0()
        self.hop2()
        self.h2()
        self.h1()
        self.stream()
        self.wo_phase()
        self.fin()
        L.append('.section .rodata,"a"')
        L.append(".p2align 6")
        L.append(f".amdhsa_kernel {KNAME}")
        L.append("  .amdhsa_next_free_vgpr 256")
        L.append("  .amdhsa_next_free_sgpr 96")
        L.append("  .amdhsa_accum_offset 256")
        L.append("  .amdhsa_group_segment_fixed_size 0")
        L.append("  .amdhsa_kernarg_size 112")
        L.append("  .amdhsa_user_sgpr_count 2")
        L.append("  .amdhsa_user_sgpr_kernarg_segment_ptr 1")
        L.append("  .amdhsa_system_sgpr_workgroup_id_x 1")
        L.append(".end_amdhsa_kernel")
        return "\n".join(L) + "\n"

if __name__ == "__main__":
    out = sys.argv[1]
    kw = json.loads(sys.argv[2]) if len(sys.argv) > 2 else {}
    open(out, "w").write(Gen(**kw).build())
```

```python
import sys, json, math, struct

KNAME = "gated_mix__sliding_block_cached__gqa_block_cached__decode_kernel"
HEADER = open("gated_mix__sliding_block_cached__gqa_block_cached__decode.s.ref").read().split("; Override launch")[0]

def f32bits(x):
    return struct.unpack("<I", struct.pack("<f", x))[0]

Q0_OFF = 0
H1_OFF = 0x80000
H1_STRIDE = 1152
P2_OFF = 0x140000
P2_STRIDE = 4608
CNT_OFF = 0x2c0000
STAMP_OFF = 200 * 1024 * 1024
L_Q = 0
L_F = 1024
L_CNT = 1032
L_FLAG = 1036
L_ML = 2048
L_ACC = 6144
LDS_BYTES = 6144 + 8192

SPIN = 1 << 17

class Gen:
    def __init__(self, stamps=False, NB=2, pads=None, RB=16, pollsleep=2, pace=12, bar0=True, p1sleep=2, p2sleep=4, NS=6, ND=2, abl=()):
        self.L = []
        self.stamps = stamps
        self.NB = NB
        self.pads = pads
        self.RB = RB
        self.pollsleep = pollsleep
        self.pace = pace
        self.abl = set(abl)
        self.NS = NS
        self.ND = ND
        self.bar0 = bar0
        self.p1sleep = p1sleep
        self.p2sleep = p2sleep
        self.sites = []
    def a(self, s):
        for line in s.strip("\n").split("\n"):
            self.L.append("    " + line.strip() if not line.strip().endswith(":") else line.strip())
    def stamp(self, k):
        if self.stamps:
            self.a(f"s_memrealtime s[{72+2*k}:{73+2*k}]")
    def site(self, chain):
        n = len(self.sites)
        self.sites.append(chain)
        self.a(f"L_site{n}:")
        if isinstance(self.pads, dict):
            ch = self.pads.get(chain, [])
            if n in ch:
                i = ch.index(n)
                tgt = f"L_site{ch[i+1]}" if i + 1 < len(ch) else f"L_chain_done_{chain}"
                self.a(f"s_cbranch_execz {tgt}")
    def gap(self, tag, jump=True):
        if jump: self.a(f"s_branch L_gap_{tag}")
        self.L.append("    .fill 288, 4, 0xBF800000")
        self.L.append("    .p2align 6")
        self.a(f"L_gap_{tag}:")
    def rend(self, chain):
        self.a(f"L_rend_{chain}:")
    def run_chain(self, chain):
        if isinstance(self.pads, dict) and self.pads.get(chain):
            self.a("s_mov_b64 exec, 0")
            self.a(f"s_branch L_site{self.pads[chain][0]}")
            self.a(f"L_chain_done_{chain}:")
            self.a("s_mov_b64 exec, -1")

    def prologue(self):
        a = self.a
        a("""
        s_cmp_ge_u32 s2, 256
        s_cbranch_scc1 L_end
        s_load_dwordx16 s[16:31], s[0:1], 0
        s_load_dwordx8 s[32:39], s[0:1], 64
        s_load_dwordx4 s[40:43], s[0:1], 96
        s_memrealtime s[88:89]
        """)
        self.stamp(0)
        a("""
        v_lshrrev_b32 v2, 6, v0
        v_and_b32 v1, 63, v0
        v_readfirstlane_b32 s3, v2
        s_mov_b32 s46, 0x4000000
        s_mov_b32 s47, 0x20000
        s_mov_b64 s[50:51], s[46:47]
        s_mov_b64 s[54:55], s[46:47]
        s_mov_b64 s[58:59], s[46:47]
        s_mov_b32 s62, 0x480000
        s_mov_b32 s63, 0x20000
        s_mov_b64 s[66:67], s[62:63]
        s_lshr_b32 s4, s2, 7
        s_lshr_b32 s7, s2, 3
        s_and_b32 s5, s7, 15
        s_and_b32 s6, s2, 7
        s_lshr_b32 s8, s6, 2
        s_and_b32 s9, s6, 3
        v_lshrrev_b32 v2, 4, v1
        v_and_b32 v3, 15, v1
        """)
        a(f"s_mov_b32 s10, 0x{f32bits(math.log2(math.e) / math.sqrt(128.0)):08x}")
        a("""
        v_and_b32 v8, 1, v1
        v_lshlrev_b32 v8, 4, v8
        v_mov_b32 v9, 0xffff
        v_lshlrev_b32 v8, v8, v9
        v_bfe_u32 v9, v1, 1, 2
        v_cmp_eq_u32 vcc, 0, v9
        v_cmp_eq_u32 s[12:13], 1, v9
        v_cmp_eq_u32 s[14:15], 2, v9
        v_cndmask_b32 v4, 0, v8, vcc
        v_cmp_eq_u32 vcc, 3, v9
        v_cndmask_b32 v5, 0, v8, s[12:13]
        v_cndmask_b32 v6, 0, v8, s[14:15]
        v_cndmask_b32 v7, 0, v8, vcc
        s_cmp_ge_u32 s3, 3
        s_cbranch_scc1 L_stream
        s_cmp_eq_u32 s3, 1
        s_cbranch_scc1 L_h1
        s_cmp_eq_u32 s3, 2
        s_cbranch_scc1 L_h2
        """)

    def srds(self):
        self.a("""
        s_cmp_eq_u32 s4, 0
        s_waitcnt lgkmcnt(0)
        s_cselect_b64 s[60:61], s[22:23], s[32:33]
        s_cselect_b64 s[64:65], s[24:25], s[34:35]
        s_mov_b64 s[44:45], s[18:19]
        s_mov_b64 s[48:49], s[20:21]
        s_mov_b64 s[52:53], s[28:29]
        s_mov_b64 s[56:57], s[30:31]
        """)

    def spin_init(self, s):
        self.a(f"s_mov_b32 s{s}, {SPIN}")
    def spin_check(self, s, loop):
        self.a(f"""
        s_sub_u32 s{s}, s{s}, 1
        s_cmp_lg_u32 s{s}, 0
        s_cbranch_scc1 {loop}
        """)

    def all_flags(self, tag):
        a = self.a
        a("v_and_b32 v8, 3, v1")
        a("v_lshlrev_b32 v8, 6, v8")
        self.spin_init(11)
        a(f"L_af_{tag}:")
        a(f"""
        global_load_dword v9, v8, s[40:41] offset:32 sc1
        s_waitcnt vmcnt(0)
        v_cmp_gt_u32 vcc, 64, v9
        s_cbranch_vccz L_afd_{tag}
        s_sleep 32
        """)
        self.spin_check(11, f"L_af_{tag}")
        a(f"L_afd_{tag}:")

    def h0(self):
        a = self.a
        if "noprio" not in self.abl: a("s_setprio 3")
        a("""
        v_lshrrev_b32 v8, 3, v3
        v_mul_u32_u24 v8, 1152, v8
        v_mul_u32_u24 v9, 72, v2
        s_mul_i32 s11, s9, 288
        v_add3_u32 v8, v8, v9, s11
        v_mul_u32_u24 v9, 0x48000, v2
        v_lshl_add_u32 v9, v3, 4, v9
        s_mul_i32 s11, s9, 0x120000
        s_lshl_b32 s12, s5, 9
        s_lshl_b32 s13, s8, 8
        s_add_u32 s11, s11, s12
        s_add_u32 s11, s11, s13
        s_and_b32 s12, s5, 3
        s_lshl_b32 s12, s12, 6
        s_lshr_b32 s13, s5, 2
        s_lshl_b32 s13, s13, 3
        s_add_u32 s14, s12, s13
        s_mov_b64 s[90:91], 0
        """)
        self.srds()
        a("""
        s_or_b32 s88, s88, 1
        s_mov_b64 s[92:93], s[88:89]
        global_load_dwordx4 v[16:19], v8, s[16:17] nt
        global_load_dwordx4 v[20:23], v8, s[16:17] offset:16 nt
        global_load_dwordx4 v[24:27], v8, s[16:17] offset:32 nt
        global_load_dwordx4 v[28:31], v8, s[16:17] offset:48 nt
        global_load_dwordx2 v[32:33], v8, s[16:17] offset:64 nt
        """)
        if "nononce" not in self.abl: a("s_atomic_cmpswap_x2 s[88:91], s[40:41], s14 glc")
        if "earlybar" in self.abl: a("s_barrier")
        if "linwq" in self.abl:
            a("v_lshlrev_b32 v9, 4, v1")
            a("s_and_b32 s11, s2, 127")
            a("s_mul_i32 s11, s11, 36864")
        for t in range(36):
            a(f"buffer_load_dwordx4 v[{64+4*t}:{67+4*t}], v9, s[60:63], s11 offen nt")
            if t < 35:
                a("s_addk_i32 s11, 0x2000" if "linwq" not in self.abl else "s_addk_i32 s11, 0x400")
        if "earlybar" not in self.abl: a("s_barrier")
        self.stamp(1)
        a(f"""
        s_lshl_b32 s12, s5, 4
        s_lshl_b32 s13, s4, 3
        s_add_u32 s12, s12, s13
        s_add_u32 s12, s12, s6
        s_lshl_b32 s12, s12, 11
        v_lshl_add_u32 v48, v1, 4, s12
        v_lshrrev_b32 v8, 5, v1
        v_lshlrev_b32 v49, 13, v8
        v_and_b32 v9, 31, v1
        v_lshl_add_u32 v49, v9, 4, v49
        s_lshl_b32 s13, s5, 15
        s_lshl_b32 s14, s4, 9
        s_add_u32 s13, s13, s14
        v_add_u32 v49, s13, v49
        v_add_u32 v50, 4096, v49
        v_add_u32 v56, 16384, v49
        v_add_u32 v57, 20480, v49
        v_lshlrev_b32 v51, 8, v8
        v_lshl_add_u32 v51, v3, 4, v51
        v_and_b32 v10, 1, v2
        v_lshl_add_u32 v51, v10, 3, v51
        s_mul_i32 s12, s2, {H1_STRIDE}
        s_add_u32 s12, s12, {H1_OFF}
        v_lshl_add_u32 v52, v1, 4, s12
        v_mov_b32 v54, s12
        s_mov_b32 s12, 0x01000100
        s_mov_b32 s13, 0x03020302
        s_waitcnt vmcnt(36)
        """)
        for t in range(36):
            if t % 6 == 0:
                self.site("h")
            A = 40 + 4 * (t % 2)
            a(f"v_perm_b32 v34, v{16+t//2}, v{16+t//2}, s{12+(t%2)}")
            for r in range(4):
                a(f"v_and_b32 v{A+r}, v34, v{4+r}")
            a(f"s_waitcnt vmcnt({35-t})")
            a("s_nop 0")
            c = "0" if t == 0 else "v[36:39]"
            a(f"v_mfma_f32_16x16x32_bf16 v[36:39], v[{A}:{A+3}], v[{64+4*t}:{67+4*t}], {c}")
        self.site("h")
        a("""
        s_waitcnt lgkmcnt(0)
        s_cmp_eq_u64 s[88:89], 0
        s_cselect_b64 s[88:89], s[92:93], s[88:89]
        v_mov_b32 v40, s88
        v_mov_b32 v41, s89
        v_mov_b32 v34, s88
        v_mov_b32 v35, s89
        s_nop 0
        """)
        if "noqx" in self.abl: a("s_branch L_pqd")
        a("""
        global_store_dwordx4 v48, v[34:37], s[42:43] sc1
        global_store_dwordx4 v48, v[38:41], s[42:43] offset:1024 sc1
        """)
        self.stamp(2)
        self.spin_init(11)
        a("L_pq:")
        for br in range(2):
            for qd in range(4):
                for hf in range(2):
                    r = 64 + 32 * br + 8 * qd + 4 * hf
                    va = (49, 50, 56, 57)[br * 2 + (qd >> 1)]
                    a(f"global_load_dwordx4 v[{r}:{r+3}], v{va}, s[42:43] offset:{(qd&1)*2048 + hf*1024} sc1")
        a("s_mov_b64 s[14:15], 0")
        self.site("h")
        for i in range(16):
            r = 64 + 4 * i + (0 if i % 2 == 0 else 2)
            a(f"s_waitcnt vmcnt({15-i})")
            a(f"v_cmp_ne_u64 vcc, s[88:89], v[{r}:{r+1}]")
            a("s_or_b64 s[14:15], s[14:15], vcc")
        if "nopoll" in self.abl: a("s_branch L_pqd")
        a(f"""
        s_cbranch_scc0 L_pqd
        s_sleep {self.pollsleep}
        """)
        self.spin_check(11, "L_pq")
        a("L_pqd:")
        self.site("h")
        self.stamp(3)
        for br in range(2):
            r = 64 + 32 * br + 2
            for k in range(4):
                a(f"v_add_f32 v{r+k}, v{r+k}, v{r+8+k}")
                a(f"v_add_f32 v{r+16+k}, v{r+16+k}, v{r+24+k}")
            for k in range(4):
                a(f"v_add_f32 v{r+k}, v{r+k}, v{r+16+k}")
            a(f"v_cvt_pk_bf16_f32 v{r}, v{r}, v{r+1}")
            a(f"v_cvt_pk_bf16_f32 v{r+1}, v{r+2}, v{r+3}")
            a(f"ds_write_b64 v51, v[{r}:{r+1}] offset:{L_Q + br*512}")
        a(f"""
        v_mov_b32 v59, {L_CNT}
        v_mov_b32 v8, 1
        s_waitcnt lgkmcnt(0)
        ds_write_b32 v59, v8 offset:4
        """)
        self.stamp(4)
        self.rend("h")
        self.gap("t")
        self.site("t")
        a(f"""
        v_lshrrev_b32 v8, 3, v3
        v_lshl_add_u32 v54, v8, 3, v54
        v_lshlrev_b32 v57, 4, v1
        v_lshlrev_b32 v58, 3, v1
        v_mov_b32 v59, {L_CNT}
        s_mov_b32 s68, 0
        """)
        a("""
        s_and_b32 s12, s2, 0xc0
        s_lshl_b32 s13, s6, 3
        s_and_b32 s14, s7, 7
        s_or_b32 s12, s12, s13
        s_or_b32 s69, s12, s14
        """)
        self.hop2_setup()
        self.spin_init(11)
        a("L_wa:")
        a("""
        ds_read_b32 v8, v59
        s_waitcnt lgkmcnt(0)
        v_cmp_ne_u32 vcc, 52, v8
        s_cbranch_vccz L_comb
        s_sleep 8
        """)
        self.spin_check(11, "L_wa")
        a("L_comb:")
        self.site("t")
        for s in range(4):
            a(f"ds_read_b64 v[{16+2*s}:{17+2*s}], v58 offset:{L_ML + s*512}")
        for s in range(4):
            a(f"ds_read_b128 v[{24+4*s}:{27+4*s}], v57 offset:{L_ACC + s*1024}")
        a("""
        s_waitcnt lgkmcnt(4)
        v_max3_f32 v40, v16, v18, v20
        v_max_f32 v40, v40, v22
        v_sub_f32 v16, v16, v40
        v_sub_f32 v18, v18, v40
        v_sub_f32 v20, v20, v40
        v_sub_f32 v22, v22, v40
        v_exp_f32 v16, v16
        v_exp_f32 v18, v18
        v_exp_f32 v20, v20
        v_exp_f32 v22, v22
        s_waitcnt lgkmcnt(0)
        """)
        for k in range(4):
            a(f"v_mul_f32 v{24+k}, v{24+k}, v16")
        for s in range(1, 4):
            for k in range(4):
                a(f"v_fmac_f32 v{24+k}, v{24+4*s+k}, v{16+2*s}")
        a("v_mul_f32 v41, v17, v16")
        for k in range(4):
            a(f"v_min_u32 v{24+k}, -2, v{24+k}")
        a("""
        global_store_dwordx4 v52, v[24:27], s[42:43] sc1
        v_fmac_f32 v41, v19, v18
        v_fmac_f32 v41, v21, v20
        v_fmac_f32 v41, v23, v22
        v_min_u32 v40, -2, v40
        v_mov_b32 v42, v41
        s_nop 1
        v_permlane32_swap_b32 v42, v41
        v_add_f32 v41, v41, v42
        v_mov_b32 v42, v41
        s_nop 1
        v_permlane16_swap_b32 v42, v41
        v_add_f32 v41, v41, v42
        v_min_u32 v41, -2, v41
        global_store_dwordx2 v54, v[40:41], s[42:43] offset:1024 sc1
        s_cmp_lg_u32 s68, 0
        s_cbranch_scc1 L_hop2
        s_mov_b32 s68, 1
        """)
        self.stamp(5)
        a(f"""
        v_add_u32 v52, {256*H1_STRIDE}, v52
        v_add_u32 v54, {256*H1_STRIDE}, v54
        v_add_u32 v57, 4096, v57
        v_add_u32 v58, 2048, v58
        """)
        self.all_flags("h0")
        a("""
        v_mov_b32 v8, 2
        ds_write_b32 v59, v8 offset:4
        s_waitcnt lgkmcnt(0)
        s_barrier
        s_branch L_comb
        """)

    def hop2_setup(self):
        a = self.a
        a(f"""
        s_lshl_b32 s12, s69, 4
        s_add_u32 s12, s12, {P2_OFF}
        v_mul_u32_u24 v60, {P2_STRIDE}, v1
        v_add_u32 v60, s12, v60
        v_add_u32 v61, {64*P2_STRIDE}, v60
        v_add_u32 v62, {128*P2_STRIDE}, v60
        v_add_u32 v63, {192*P2_STRIDE}, v60
        s_lshl_b32 s12, s69, 3
        v_lshl_add_u32 v46, v2, 1, s12
        """)

    def hop2(self):
        a = self.a
        a("L_hop2:")
        self.stamp(6)
        if "notail" in self.abl: a("s_branch L_fin")
        a("s_barrier")
        self.spin_init(11)
        a("L_p2:")
        self.site("t")
        for k in range(4):
            a(f"global_load_dwordx4 v[{64+4*k}:{67+4*k}], v{60+k}, s[42:43] sc1")
        a("s_waitcnt vmcnt(0)")
        a("v_max3_u32 v8, v64, v65, v66")
        a("v_max3_u32 v9, v67, v68, v69")
        a("v_max3_u32 v10, v70, v71, v72")
        a("v_max3_u32 v8, v8, v73, v74")
        a("v_max3_u32 v9, v9, v75, v76")
        a("v_max3_u32 v10, v10, v77, v78")
        a("v_max3_u32 v8, v8, v9, v79")
        a("v_max_u32 v8, v8, v10")
        a("v_cmp_eq_u32 vcc, -1, v8")
        a("s_cbranch_vccz L_p2d")
        a("s_mov_b64 exec, vcc")
        if self.p2sleep: a(f"s_sleep {self.p2sleep}")
        self.spin_check(11, "L_p2")
        a("L_p2d:")
        a("s_mov_b64 exec, -1")
        for k in range(4):
            a(f"v_add_f32 v{64+k}, v{64+k}, v{68+k}")
        for k in range(4):
            a(f"v_add_f32 v{72+k}, v{72+k}, v{76+k}")
        for k in range(4):
            a(f"v_add_f32 v{64+k}, v{64+k}, v{72+k}")
        a("""
        s_nop 0
        v_permlane32_swap_b32 v64, v66
        v_permlane32_swap_b32 v65, v67
        v_add_f32 v64, v64, v66
        v_add_f32 v65, v65, v67
        s_nop 1
        v_permlane16_swap_b32 v64, v65
        v_add_f32 v64, v64, v65
        s_nop 1
        v_add_f32_dpp v64, v64, v64 quad_perm:[1,0,3,2] row_mask:0xf bank_mask:0xf
        s_nop 1
        v_add_f32_dpp v64, v64, v64 quad_perm:[2,3,0,1] row_mask:0xf bank_mask:0xf
        s_nop 1
        v_add_f32_dpp v64, v64, v64 row_half_mirror row_mask:0xf bank_mask:0xf
        s_nop 1
        v_add_f32_dpp v64, v64, v64 row_mirror row_mask:0xf bank_mask:0xf
        s_mov_b32 s12, 0x00010001
        s_mov_b32 s13, 0x00010001
        v_cvt_pk_bf16_f32 v64, v64, v64
        s_mov_b64 exec, s[12:13]
        global_store_short v46, v64, s[38:39]
        """)
        self.stamp(7)
        a("s_branch L_fin" if self.stamps else "s_endpgm")
        self.rend("t")

    def h2(self):
        a = self.a
        a("L_h2:")
        a(f"""
        v_mov_b32 v8, {L_CNT}
        v_mov_b32 v9, 0
        v_mov_b32 v48, -1
        v_mov_b32 v49, -1
        v_mov_b32 v50, -1
        v_mov_b32 v51, -1
        s_mul_i32 s12, s2, {H1_STRIDE}
        s_add_u32 s12, s12, {H1_OFF}
        v_lshl_add_u32 v52, v1, 4, s12
        v_add_u32 v53, {256*H1_STRIDE}, v52
        v_mov_b32 v54, s12
        v_add_u32 v55, {256*H1_STRIDE}, v54
        s_mul_i32 s12, s2, {P2_STRIDE}
        s_add_u32 s12, s12, {P2_OFF}
        v_lshl_add_u32 v56, v1, 4, s12
        """)
        self.srds()
        a("ds_write_b32 v8, v9")
        a("ds_write_b32 v8, v9 offset:4")
        a("s_waitcnt lgkmcnt(0)")
        a("s_barrier")
        self.run_chain("h")
        if "noclear" not in self.abl: a("""
        global_store_dwordx4 v52, v[48:51], s[42:43] sc1
        global_store_dwordx4 v53, v[48:51], s[42:43] sc1
        global_store_dwordx4 v54, v[48:51], s[42:43] offset:1024 sc1
        global_store_dwordx4 v55, v[48:51], s[42:43] offset:1024 sc1
        global_store_dwordx4 v56, v[48:51], s[42:43] sc1
        global_store_dwordx4 v56, v[48:51], s[42:43] offset:1024 sc1
        global_store_dwordx4 v56, v[48:51], s[42:43] offset:2048 sc1
        global_store_dwordx4 v56, v[48:51], s[42:43] offset:3072 sc1
        global_store_dwordx4 v56, v[48:51], s[42:43] offset:3584 sc1
        """)
        a(f"""
        s_lshl_b32 s12, s7, 7
        s_add_u32 s12, s12, {CNT_OFF}
        v_mov_b32 v57, s12
        s_cmp_lg_u32 s6, 0
        s_cbranch_scc1 L_nocnt
        global_store_dword v57, v9, s[42:43] sc1
        L_nocnt:
        """)
        a("s_add_u32 s69, s2, 256")
        self.hop2_setup()
        a("""
        s_and_b32 s13, s2, 3
        s_lshl_b32 s13, s13, 6
        s_add_u32 s13, s13, 32
        s_mov_b32 s12, 1
        s_waitcnt vmcnt(0)
        s_atomic_add s12, s[40:41], s13
        """)
        self.stamp(1)
        a("""
        v_mov_b32 v9, 16
        s_mov_b64 exec, 1
        ds_add_u32 v8, v9
        s_mov_b64 exec, -1
        s_waitcnt lgkmcnt(0)
        """)
        self.run_chain("t")
        self.run_chain("s2")
        a("s_cmp_ge_u32 s2, 32")
        a("s_cbranch_scc1 L_fin")
        a("s_barrier")
        a("s_branch L_hop2")

    def h1(self):
        a = self.a
        a("L_h1:")
        a("""
        v_and_b32 v8, 31, v1
        v_mul_u32_u24 v8, 36, v8
        v_lshrrev_b32 v9, 5, v1
        v_mul_u32_u24 v10, 1152, v9
        v_add_u32 v10, v10, v8
        """)
        self.srds()
        a("""
        global_load_dwordx4 v[16:19], v10, s[16:17] nt
        global_load_dwordx4 v[20:23], v10, s[16:17] offset:16 nt
        global_load_dword v24, v10, s[16:17] offset:32 nt
        global_load_dwordx4 v[28:31], v8, s[36:37] nt
        global_load_dwordx4 v[32:35], v8, s[36:37] offset:16 nt
        global_load_dword v36, v8, s[36:37] offset:32 nt
        v_mov_b32 v40, 0
        v_mov_b32 v41, 0
        """)
        a("s_barrier")
        a("s_waitcnt vmcnt(0)")
        for k in range(9):
            x, w = 16 + k, 28 + k
            a(f"""
            v_lshlrev_b32 v42, 16, v{x}
            v_and_b32 v43, 0xffff0000, v{x}
            v_lshlrev_b32 v44, 16, v{w}
            v_and_b32 v45, 0xffff0000, v{w}
            v_mul_f32 v42, v42, v44
            v_mul_f32 v43, v43, v45
            v_cvt_pk_bf16_f32 v42, v42, v43
            v_and_b32 v43, 0xffff0000, v42
            v_lshlrev_b32 v42, 16, v42
            v_add_f32 v41, v41, v43
            v_add_f32 v40, v40, v42
            """)
        a(f"""
        v_add_f32 v40, v40, v41
        s_nop 1
        v_add_f32_dpp v40, v40, v40 quad_perm:[1,0,3,2] row_mask:0xf bank_mask:0xf
        s_nop 1
        v_add_f32_dpp v40, v40, v40 quad_perm:[2,3,0,1] row_mask:0xf bank_mask:0xf
        s_nop 1
        v_add_f32_dpp v40, v40, v40 row_half_mirror row_mask:0xf bank_mask:0xf
        s_nop 1
        v_add_f32_dpp v40, v40, v40 row_mirror row_mask:0xf bank_mask:0xf
        s_nop 0
        v_mov_b32 v41, v40
        s_nop 1
        v_permlane16_swap_b32 v41, v40
        v_add_f32 v40, v40, v41
        v_cvt_pk_bf16_f32 v40, v40, v40
        v_lshlrev_b32 v40, 16, v40
        v_mul_f32 v40, 0x{f32bits(-math.log2(math.e)):08x}, v40
        v_exp_f32 v40, v40
        s_nop 0
        v_add_f32 v40, 1.0, v40
        v_rcp_f32 v40, v40
        s_nop 0
        v_cvt_pk_bf16_f32 v40, v40, v40
        v_lshlrev_b32 v40, 16, v40
        v_sub_f32 v41, 1.0, v40
        v_cvt_pk_bf16_f32 v41, v41, v41
        v_lshlrev_b32 v41, 16, v41
        s_cmp_eq_u32 s4, 0
        s_cselect_b64 s[12:13], 0, -1
        v_lshlrev_b32 v9, 2, v9
        v_cndmask_b32 v40, v40, v41, s[12:13]
        ds_write_b32 v9, v40 offset:{L_F}
        v_mov_b32 v8, {L_CNT}
        v_mov_b32 v9, 32
        s_waitcnt lgkmcnt(0)
        s_mov_b64 exec, 1
        ds_add_u32 v8, v9
        s_mov_b64 exec, -1
        s_mov_b32 s15, 4
        """)
        self.run_chain("s1")
        self.wo_setup()
        a("s_mov_b32 s12, 0x00ff00ff")
        a("s_mov_b32 s13, 0x00ff00ff")
        a("s_mov_b64 exec, s[12:13]")
        if "noh1wo" not in self.abl: self.wo_loads()
        a("s_mov_b64 exec, -1")
        a("s_branch L_barx")

    def wo_setup(self):
        a = self.a
        a(f"""
        v_mul_u32_u24 v48, 2304, v2
        v_lshl_add_u32 v48, v3, 4, v48
        s_lshl_b32 s12, s5, 8
        s_lshl_b32 s13, s6, 5
        s_add_u32 s12, s12, s13
        s_mul_i32 s70, s12, 1152
        s_lshl_b32 s12, s15, 8
        s_add_u32 s70, s70, s12
        v_lshrrev_b32 v53, 3, v3
        v_and_b32 v54, 7, v1
        v_lshl_add_u32 v54, v53, 7, v54
        v_mul_u32_u24 v54, {H1_STRIDE}, v54
        s_lshl_b32 s12, s4, 8
        s_lshl_b32 s13, s5, 3
        s_add_u32 s12, s12, s13
        s_mul_i32 s12, s12, {H1_STRIDE}
        s_add_u32 s12, s12, {H1_OFF}
        s_lshl_b32 s13, s8, 3
        s_add_u32 s13, s13, s12
        v_add_u32 v50, s13, v54
        s_lshl_b32 s13, s9, 8
        s_add_u32 s12, s12, s13
        s_lshl_b32 s13, s8, 7
        s_add_u32 s12, s12, s13
        v_lshl_add_u32 v49, v2, 5, v54
        v_add_u32 v49, s12, v49
        v_lshlrev_b32 v52, 2, v53
        v_lshrrev_b32 v53, 1, v2
        v_mul_u32_u24 v53, 2304, v53
        v_lshl_add_u32 v53, v3, 5, v53
        v_and_b32 v54, 1, v2
        v_lshl_add_u32 v53, v54, 4, v53
        s_mul_i32 s12, s2, {P2_STRIDE}
        s_lshl_b32 s13, s15, 9
        s_add_u32 s12, s12, s13
        s_add_u32 s12, s12, {P2_OFF}
        v_add_u32 v51, s12, v53
        """)

    def wo_loads(self):
        a = self.a
        for r in range(4):
            for u in range(2):
                t = u * 4 + r
                a(f"buffer_load_dwordx4 v[{64+4*t}:{67+4*t}], v48, s[64:67], s70 offen offset:{u*1152} nt")
            if r < 3:
                a(f"s_addk_i32 s70, {8*1152}")

    def wo_phase(self):
        a = self.a
        a("L_barx:")
        a("s_barrier")
        if "notail" in self.abl:
            self.stamp(5)
            a("s_waitcnt vmcnt(0)")
            self.stamp(6)
            a("s_branch L_fin")
        a(f"ds_read_b32 v52, v52 offset:{L_F}")
        self.stamp(5)
        self.spin_init(11)
        a("L_p1:")
        self.site("s2")
        a("""
        global_load_dwordx2 v[104:105], v50, s[42:43] offset:1024 sc1
        global_load_dwordx4 v[96:99], v49, s[42:43] sc1
        global_load_dwordx4 v[100:103], v49, s[42:43] offset:16 sc1
        s_waitcnt vmcnt(0)
        v_max3_u32 v8, v96, v97, v98
        v_max3_u32 v9, v99, v100, v101
        v_max3_u32 v8, v8, v102, v103
        v_max3_u32 v9, v9, v104, v105
        v_max_u32 v8, v8, v9
        v_cmp_eq_u32 vcc, -1, v8
        s_cbranch_vccz L_p1d
        s_mov_b64 exec, vcc
        """)
        if self.p1sleep: a(f"s_sleep {self.p1sleep}")
        self.spin_check(11, "L_p1")
        a("L_p1d:")
        a("s_mov_b64 exec, -1")
        self.site("s2")
        self.stamp(6)
        D1 = "quad_perm:[1,0,3,2] row_mask:0xf bank_mask:0xf"
        D2 = "quad_perm:[2,3,0,1] row_mask:0xf bank_mask:0xf"
        D3 = "row_half_mirror row_mask:0xf bank_mask:0xf"
        a(f"""
        v_max_f32_dpp v8, v104, v104 {D1}
        s_nop 1
        v_max_f32_dpp v8, v8, v8 {D2}
        s_nop 1
        v_max_f32_dpp v8, v8, v8 {D3}
        v_sub_f32 v8, v104, v8
        v_exp_f32 v8, v8
        s_waitcnt lgkmcnt(0)
        v_mul_f32 v105, v105, v8
        """)
        for t in range(8):
            a(f"v_mul_f32 v{96+t}, v{96+t}, v8")
        for D in (D1, D2, D3):
            a(f"v_add_f32_dpp v105, v105, v105 {D}")
            if D is D3:
                a("v_rcp_f32 v105, v105")
            for t in range(8):
                a(f"v_add_f32_dpp v{96+t}, v{96+t}, v{96+t} {D}")
        self.site("s2")
        a("v_mul_f32 v105, v105, v52")
        for t in range(8):
            a(f"v_mul_f32 v{96+t}, v{96+t}, v105")
        for t in range(8):
            A = 24 + 4 * (t % 2)
            a(f"v_cvt_pk_bf16_f32 v{96+t}, v{96+t}, v{96+t}")
            for r in range(4):
                a(f"v_and_b32 v{A+r}, v{96+t}, v{4+r}")
            a("s_nop 1")
            c = "0" if t == 0 else "v[20:23]"
            a(f"v_mfma_f32_16x16x32_bf16 v[20:23], v[{A}:{A+3}], v[{64+4*t}:{67+4*t}], {c}")
        a("""
        s_mov_b32 s12, 0x00ff00ff
        s_mov_b32 s13, 0x00ff00ff
        s_cmp_eq_u32 s15, 4
        s_cselect_b64 s[12:13], s[12:13], -1
        s_nop 4
        v_min_u32 v20, -2, v20
        v_min_u32 v21, -2, v21
        v_min_u32 v22, -2, v22
        v_min_u32 v23, -2, v23
        s_mov_b64 exec, s[12:13]
        global_store_dwordx4 v51, v[20:23], s[42:43] sc1
        s_barrier
        """)
        self.stamp(7)
        a("s_branch L_fin" if self.stamps else "s_endpgm")
        self.rend("s2")

    def kloads(self, r, srd, so):
        for i in range(4):
            self.a(f"buffer_load_dwordx4 v[{r+4*i}:{r+4*i+3}], v8, s[{srd}:{srd+3}], s{so} offen offset:{i*64} nt")
    def vloads(self, r, srd, so):
        for i in range(4):
            self.a(f"buffer_load_dwordx4 v[{r+4*i}:{r+4*i+3}], v9, s[{srd}:{srd+3}], s{so} offen offset:{i*256} nt")

    def qk(self, r):
        for i in range(4):
            c = "0" if i == 0 else "v[16:19]"
            self.a(f"v_mfma_f32_16x16x32_bf16 v[16:19], v[{r+4*i}:{r+4*i+3}], v[{32+4*i}:{35+4*i}], {c}")

    def softmax(self):
        self.a("""
        v_max3_f32 v13, v16, v17, v18
        v_max3_f32 v13, v13, v19, v12
        v_mov_b32 v14, v13
        s_nop 1
        v_permlane32_swap_b32 v14, v13
        v_max_f32 v13, v13, v14
        v_mov_b32 v14, v13
        s_nop 1
        v_permlane16_swap_b32 v14, v13
        v_max_f32 v12, v13, v14
        v_mul_f32 v13, s10, v12
        v_sub_f32 v15, v10, v13
        v_fma_f32 v16, v16, s10, -v13
        v_fma_f32 v17, v17, s10, -v13
        v_fma_f32 v18, v18, s10, -v13
        v_fma_f32 v19, v19, s10, -v13
        v_exp_f32 v15, v15
        v_exp_f32 v16, v16
        v_exp_f32 v17, v17
        v_exp_f32 v18, v18
        v_exp_f32 v19, v19
        v_mov_b32 v10, v13
        v_mul_f32 v20, v20, v15
        v_mul_f32 v21, v21, v15
        v_mul_f32 v22, v22, v15
        v_mul_f32 v23, v23, v15
        v_fma_f32 v11, v11, v15, v16
        v_add_f32 v13, v17, v18
        v_add_f32 v11, v11, v19
        v_cvt_pk_bf16_f32 v16, v16, v16
        v_cvt_pk_bf16_f32 v17, v17, v17
        v_cvt_pk_bf16_f32 v18, v18, v18
        v_cvt_pk_bf16_f32 v19, v19, v19
        v_add_f32 v11, v11, v13
        """)
    def pv(self, r, wait):
        a = self.a
        for k in range(4): a(f"v_and_b32 v{24+k}, v16, v{4+k}")
        for k in range(4): a(f"v_and_b32 v{28+k}, v17, v{4+k}")
        a(f"s_waitcnt vmcnt({wait})")
        a(f"v_mfma_f32_16x16x32_bf16 v[20:23], v[{r}:{r+3}], v[24:27], v[20:23]")
        a(f"v_mfma_f32_16x16x32_bf16 v[20:23], v[{r+4}:{r+7}], v[28:31], v[20:23]")
        for k in range(4): a(f"v_and_b32 v{24+k}, v18, v{4+k}")
        for k in range(4): a(f"v_and_b32 v{28+k}, v19, v{4+k}")
        a(f"v_mfma_f32_16x16x32_bf16 v[20:23], v[{r+8}:{r+11}], v[24:27], v[20:23]")
        a("s_nop 0")
        a(f"v_mfma_f32_16x16x32_bf16 v[20:23], v[{r+12}:{r+15}], v[28:31], v[20:23]")

    def state_init(self):
        self.a(f"""
        v_mov_b32 v12, 0x{f32bits(-1e30):08x}
        v_mov_b32 v10, 0x{f32bits(-1e29):08x}
        v_mov_b32 v11, 0
        v_mov_b32 v20, 0
        v_mov_b32 v21, 0
        v_mov_b32 v22, 0
        v_mov_b32 v23, 0
        """)

    def lds_wait(self, tag, val, sleep):
        a = self.a
        self.spin_init(11)
        a(f"L_lw_{tag}:")
        a(f"""
        ds_read_b32 v13, v58 offset:4
        s_waitcnt lgkmcnt(0)
        v_cmp_gt_u32 vcc, {val}, v13
        s_cbranch_vccz L_lwd_{tag}
        s_sleep {sleep}
        """)
        self.spin_check(11, f"L_lw_{tag}")
        a(f"L_lwd_{tag}:")

    def stream(self):
        a = self.a
        NS, ND, RB = self.NS, self.ND, self.RB
        RS = 32 * 4096
        slot = lambda n: 256 - 32 * NS + 32 * (n % NS)
        a("L_stream:")
        a(f"""
        s_sub_u32 s15, s3, 3
        v_lshlrev_b32 v8, 8, v3
        v_lshl_add_u32 v8, v2, 4, v8
        v_lshlrev_b32 v9, 10, v2
        v_lshl_add_u32 v9, v3, 4, v9
        s_lshl_b32 s12, s6, 2
        s_add_u32 s12, s12, s15
        s_lshl_b32 s12, s12, 12
        s_lshl_b32 s13, s7, 21
        s_add_u32 s68, s12, s13
        s_add_u32 s69, s68, {(RB-1)*RS}
        s_add_u32 s95, s13, {RB*RS}
        s_add_u32 s12, s68, 0x180000
        s_sub_u32 s68, s68, {RS}
        """)
        self.srds()
        a("s_barrier")
        Q = []
        def wait_for(kind, n):
            i = Q.index((kind, n))
            a(f"s_waitcnt vmcnt({4 * (len(Q) - 1 - i)})")
        def issueK(n):
            if n < 4:
                if n: a(f"s_add_u32 s12, s12, {RS}")
                self.kloads(slot(n), 44, 12)
            else:
                a(f"s_add_u32 s68, s68, {RS}")
                self.kloads(slot(n), 52, 68)
            Q.append(("K", n))
        def issueV(n):
            if n < 4: self.vloads(slot(n) + 16, 48, 12)
            else: self.vloads(slot(n) + 16, 56, 68)
            Q.append(("V", n))
        for n in range(NS):
            for f in (issueK, issueV):
                if "pace8" in self.abl:
                    if f is issueK and 4 * len(Q) + 8 > self.pace:
                        a(f"s_waitcnt vmcnt({self.pace - 8})")
                elif 4 * len(Q) + 4 > self.pace:
                    a(f"s_waitcnt vmcnt({self.pace - 4})")
                f(n)
            if n == 0:
                a(f"""
                v_lshrrev_b32 v55, 3, v3
                v_lshlrev_b32 v55, 8, v55
                v_lshl_add_u32 v55, v2, 4, v55
                s_lshl_b32 s13, s15, 10
                v_lshl_add_u32 v56, v1, 4, s13
                s_lshl_b32 s13, s15, 9
                v_lshl_add_u32 v57, v1, 3, s13
                v_mov_b32 v58, {L_CNT}
                v_mov_b32 v59, 1
                s_mov_b32 s71, {ND}
                s_mov_b32 s14, 0
                s_lshl_b32 s92, s7, 7
                s_add_u32 s92, s92, {CNT_OFF}
                """)
                self.state_init()
        self.stamp(1)
        if "nowaitq" not in self.abl: self.lds_wait("q", 1, 1)
        self.stamp(2)
        for i in range(4):
            a(f"ds_read_b128 v[{32+4*i}:{35+4*i}], v55 offset:{L_Q + 64*i}")
        a("s_waitcnt lgkmcnt(0)")
        NU = 2 * NS - ND
        assert NU + ND - 4 <= RB
        for n in range(NU):
            self.site("s1")
            refill = n < NS
            wait_for("K", n)
            self.qk(slot(n))
            pad = 8
            if refill:
                issueK(n + NS); pad -= 5
            if n == 3:
                for i in range(4):
                    a(f"ds_read_b128 v[{32+4*i}:{35+4*i}], v55 offset:{L_Q + 512 + 64*i}")
                pad -= 4
            if pad > 0: a(f"s_nop {pad-1}")
            self.softmax()
            i = Q.index(("V", n))
            self.pv(slot(n) + 16, 4 * (len(Q) - 1 - i))
            if refill: issueV(n + NS)
            if n == 3:
                a(f"""
                s_nop 7
                ds_write_b64 v57, v[10:11] offset:{L_ML}
                ds_write_b128 v56, v[20:23] offset:{L_ACC}
                s_waitcnt lgkmcnt(0)
                s_mov_b64 exec, 1
                ds_add_u32 v58, v59
                s_mov_b64 exec, -1
                """)
                self.state_init()
                self.stamp(3)
            if n == NS:
                self.wo_setup()
        dyn = RB < 16
        NDYN = (16 - RB) * 32
        if dyn:
            self.lds_wait("c", 2, 4)
            if NU + ND - 4 == RB:
                a("s_mov_b32 s94, 1")
                a("s_atomic_add s94, s[42:43], s92 glc")
        W = 8 * ND - 4
        self.rend("s1")
        self.gap("s2")
        a("L_loop:")
        for b in range(ND):
            r = slot(NU + b)
            self.site("s2")
            a(f"s_waitcnt vmcnt({W})")
            self.qk(r)
            a(f"""
            s_cmp_lt_u32 s68, s69
            s_cbranch_scc0 L_dyn{b}
            s_add_u32 s68, s68, {RS}
            s_mov_b32 s93, s68
            """)
            if dyn:
                a(f"""
                s_cmp_lt_u32 s68, s69
                s_cbranch_scc1 L_kl{b}
                L_tk{b}:
                s_mov_b32 s94, 1
                s_atomic_add s94, s[42:43], s92 glc
                """)
            a(f"L_kl{b}:")
            self.kloads(r, 52, 93)
            a(f"L_sm{b}:")
            self.softmax()
            self.pv(r + 16, W)
            a(f"""
            s_cmp_eq_u32 s14, 1
            s_cbranch_scc1 L_nov{b}
            """)
            self.vloads(r + 16, 56, 93)
            a(f"""
            L_nov{b}:
            s_mov_b32 s14, 0
            s_cmp_eq_u32 s71, 0
            s_cbranch_scc1 L_done
            """)
        a("s_branch L_loop")
        for b in range(ND):
            a(f"L_dyn{b}:")
            self.site("s2")
            if dyn:
                a(f"""
                s_waitcnt lgkmcnt(0)
                s_lshl_b32 s93, s94, 12
                s_add_u32 s93, s93, s95
                s_cmp_lt_u32 s94, {NDYN}
                s_cbranch_scc1 L_tk{b}
                """)
            a(f"""
            s_mov_b32 s93, 0x80000000
            s_sub_u32 s71, s71, 1
            s_cmp_lg_u32 s71, {ND-1}
            s_cbranch_scc1 L_kl{b}
            s_mov_b32 s14, 1
            """)
            self.wo_loads()
            a(f"s_branch L_sm{b}")
        a("L_done:")
        self.site("s2")
        self.stamp(4)
        a(f"""
        s_nop 5
        ds_write_b64 v57, v[10:11] offset:{L_ML + 2048}
        ds_write_b128 v56, v[20:23] offset:{L_ACC + 4096}
        s_waitcnt lgkmcnt(0)
        """)

    def fin(self):
        a = self.a
        a("L_fin:")
        if self.stamps:
            a(f"""
            s_mov_b64 exec, 1
            s_lshl_b32 s12, s2, 3
            s_add_u32 s12, s12, s3
            s_lshl_b32 s12, s12, 6
            s_add_u32 s12, s12, {STAMP_OFF}
            v_mov_b32 v1, s12
            s_waitcnt lgkmcnt(0)
            """)
            for k in range(8):
                a(f"v_mov_b32 v2, s{72+2*k}")
                a(f"v_mov_b32 v3, s{73+2*k}")
                a(f"global_store_dwordx2 v1, v[2:3], s[42:43] offset:{8*k}")
                a("s_nop 1")
        a("L_end:")
        a("s_endpgm")

    def build(self):
        L = self.L
        L.append(HEADER.rstrip("\n"))
        L.append(f"; @launch grid=(256,1,1) block=(448,1,1) lds={LDS_BYTES}")
        L.append('.amdgcn_target "amdgcn-amd-amdhsa--gfx950"')
        L.append(".text")
        L.append(f".globl {KNAME}")
        L.append(".p2align 8")
        L.append(f".type {KNAME},@function")
        L.append(f"{KNAME}:")
        if self.stamps:
            for k in range(8):
                self.a(f"s_mov_b64 s[{72+2*k}:{73+2*k}], 0")
        self.prologue()
        self.h0()
        self.hop2()
        self.h2()
        self.h1()
        self.stream()
        self.wo_phase()
        self.fin()
        L.append('.section .rodata,"a"')
        L.append(".p2align 6")
        L.append(f".amdhsa_kernel {KNAME}")
        L.append("  .amdhsa_next_free_vgpr 256")
        L.append("  .amdhsa_next_free_sgpr 96")
        L.append("  .amdhsa_accum_offset 256")
        L.append("  .amdhsa_group_segment_fixed_size 0")
        L.append("  .amdhsa_kernarg_size 112")
        L.append("  .amdhsa_user_sgpr_count 2")
        L.append("  .amdhsa_user_sgpr_kernarg_segment_ptr 1")
        L.append("  .amdhsa_system_sgpr_workgroup_id_x 1")
        L.append(".end_amdhsa_kernel")
        return "\n".join(L) + "\n"

def build_with_pads(kw, limit=960):
    import subprocess, tempfile, os
    g = Gen(**kw)
    txt = g.build()
    with tempfile.TemporaryDirectory() as d:
        open(d + "/a.s", "w").write(txt)
        subprocess.check_call(["clang", "-x", "assembler", "-target", "amdgcn-amd-amdhsa", "-mcpu=gfx950", "-c", d + "/a.s", "-o", d + "/a.o"])
        nm = subprocess.check_output(["llvm-objdump", "-t", d + "/a.o"], text=True)
    addr = {}
    for line in nm.splitlines():
        p = line.split()
        if len(p) >= 4 and p[-1].startswith("L_"): addr[p[-1]] = int(p[0], 16)
    pads = {}
    for chain in sorted(set(g.sites)):
        ss = [(addr[f"L_site{i}"], i) for i, c in enumerate(g.sites) if c == chain]
        ss.sort()
        end = addr[f"L_rend_{chain}"]
        chosen = []
        while end > ss[0][0]:
            cands = [x for x in ss if end - limit <= x[0] < end]
            assert cands, (chain, hex(end))
            chosen.append(cands[0][1])
            end = cands[0][0]
        pads[chain] = chosen
    kw2 = dict(kw); kw2["pads"] = pads
    return Gen(**kw2).build(), pads

if __name__ == "__main__":
    out = sys.argv[1]
    kw = json.loads(sys.argv[2]) if len(sys.argv) > 2 else {}
    if kw.pop("usepads", True):
        txt, pads = build_with_pads(kw)
        print(out, "pads", pads)
    else:
        txt = Gen(**kw).build()
    open(out, "w").write(txt)
```

```python
import sys, json, math, struct

KNAME = "gated_mix__sliding_block_cached__gqa_block_cached__decode_kernel"
HEADER = open("gated_mix__sliding_block_cached__gqa_block_cached__decode.s.ref").read().split("; Override launch")[0]

def f32bits(x):
    return struct.unpack("<I", struct.pack("<f", x))[0]

Q0_OFF = 0
H1_OFF = 0x80000
H1_STRIDE = 1152
P2_OFF = 0x140000
P2_STRIDE = 4608
CNT_OFF = 0x2c0000
STAMP_OFF = 200 * 1024 * 1024
L_Q = 0
L_F = 1024
L_CNT = 1032
L_FLAG = 1036
L_ML = 2048
L_ACC = 6144
LDS_BYTES = 6144 + 8192

SPIN = 1 << 17

class Gen:
    def __init__(self, stamps=False, NB=2, pads=None, RB=16, pollsleep=2, pace=12, bar0=True, p1sleep=2, p2sleep=4, NS=6, ND=2, abl=(), probe=None):
        self.L = []
        self.stamps = stamps
        self.NB = NB
        self.pads = pads
        self.RB = RB
        self.pollsleep = pollsleep
        self.pace = pace
        self.probe = probe
        if probe: self.stamps = True
        self.abl = set(abl)
        self.NS = NS
        self.ND = ND
        self.bar0 = bar0
        self.p1sleep = p1sleep
        self.p2sleep = p2sleep
        self.sites = []
    def a(self, s):
        for line in s.strip("\n").split("\n"):
            self.L.append("    " + line.strip() if not line.strip().endswith(":") else line.strip())
    def stamp(self, k):
        if self.stamps:
            self.a(f"s_memrealtime s[{72+2*k}:{73+2*k}]")
    def site(self, chain):
        n = len(self.sites)
        self.sites.append(chain)
        self.a(f"L_site{n}:")
        if isinstance(self.pads, dict):
            ch = self.pads.get(chain, [])
            if n in ch:
                i = ch.index(n)
                tgt = f"L_site{ch[i+1]}" if i + 1 < len(ch) else f"L_chain_done_{chain}"
                self.a(f"s_cbranch_execz {tgt}")
    def gap(self, tag, jump=True):
        if jump: self.a(f"s_branch L_gap_{tag}")
        self.L.append("    .fill 288, 4, 0xBF800000")
        self.L.append("    .p2align 6")
        self.a(f"L_gap_{tag}:")
    def rend(self, chain):
        self.a(f"L_rend_{chain}:")
    def run_chain(self, chain):
        if isinstance(self.pads, dict) and self.pads.get(chain):
            self.a("s_mov_b64 exec, 0")
            self.a(f"s_branch L_site{self.pads[chain][0]}")
            self.a(f"L_chain_done_{chain}:")
            self.a("s_mov_b64 exec, -1")

    def prologue(self):
        a = self.a
        a("""
        s_cmp_ge_u32 s2, 256
        s_cbranch_scc1 L_end
        s_load_dwordx16 s[16:31], s[0:1], 0
        s_load_dwordx8 s[32:39], s[0:1], 64
        s_load_dwordx4 s[40:43], s[0:1], 96
        s_memrealtime s[88:89]
        """)
        self.stamp(0)
        a("""
        v_lshrrev_b32 v2, 6, v0
        v_and_b32 v1, 63, v0
        v_readfirstlane_b32 s3, v2
        s_mov_b32 s46, 0x4000000
        s_mov_b32 s47, 0x20000
        s_mov_b64 s[50:51], s[46:47]
        s_mov_b64 s[54:55], s[46:47]
        s_mov_b64 s[58:59], s[46:47]
        s_mov_b32 s62, 0x480000
        s_mov_b32 s63, 0x20000
        s_mov_b64 s[66:67], s[62:63]
        s_lshr_b32 s4, s2, 7
        s_lshr_b32 s7, s2, 3
        s_and_b32 s5, s7, 15
        s_and_b32 s6, s2, 7
        s_lshr_b32 s8, s6, 2
        s_and_b32 s9, s6, 3
        v_lshrrev_b32 v2, 4, v1
        v_and_b32 v3, 15, v1
        """)
        a(f"s_mov_b32 s10, 0x{f32bits(math.log2(math.e) / math.sqrt(128.0)):08x}")
        a("""
        v_and_b32 v8, 1, v1
        v_lshlrev_b32 v8, 4, v8
        v_mov_b32 v9, 0xffff
        v_lshlrev_b32 v8, v8, v9
        v_bfe_u32 v9, v1, 1, 2
        v_cmp_eq_u32 vcc, 0, v9
        v_cmp_eq_u32 s[12:13], 1, v9
        v_cmp_eq_u32 s[14:15], 2, v9
        v_cndmask_b32 v4, 0, v8, vcc
        v_cmp_eq_u32 vcc, 3, v9
        v_cndmask_b32 v5, 0, v8, s[12:13]
        v_cndmask_b32 v6, 0, v8, s[14:15]
        v_cndmask_b32 v7, 0, v8, vcc
        s_cmp_ge_u32 s3, 3
        s_cbranch_scc1 L_stream
        s_cmp_eq_u32 s3, 1
        s_cbranch_scc1 L_h1
        s_cmp_eq_u32 s3, 2
        s_cbranch_scc1 L_h2
        """)

    def srds(self):
        self.a("""
        s_cmp_eq_u32 s4, 0
        s_waitcnt lgkmcnt(0)
        s_cselect_b64 s[60:61], s[22:23], s[32:33]
        s_cselect_b64 s[64:65], s[24:25], s[34:35]
        s_mov_b64 s[44:45], s[18:19]
        s_mov_b64 s[48:49], s[20:21]
        s_mov_b64 s[52:53], s[28:29]
        s_mov_b64 s[56:57], s[30:31]
        """)

    def spin_init(self, s):
        self.a(f"s_mov_b32 s{s}, {SPIN}")
    def spin_check(self, s, loop):
        self.a(f"""
        s_sub_u32 s{s}, s{s}, 1
        s_cmp_lg_u32 s{s}, 0
        s_cbranch_scc1 {loop}
        """)

    def all_flags(self, tag):
        a = self.a
        a("v_and_b32 v8, 3, v1")
        a("v_lshlrev_b32 v8, 6, v8")
        self.spin_init(11)
        a(f"L_af_{tag}:")
        a(f"""
        global_load_dword v9, v8, s[40:41] offset:32 sc1
        s_waitcnt vmcnt(0)
        v_cmp_gt_u32 vcc, 64, v9
        s_cbranch_vccz L_afd_{tag}
        s_sleep 32
        """)
        self.spin_check(11, f"L_af_{tag}")
        a(f"L_afd_{tag}:")

    def h0(self):
        a = self.a
        if "noprio" not in self.abl: a("s_setprio 3")
        a("""
        v_lshrrev_b32 v8, 3, v3
        v_mul_u32_u24 v8, 1152, v8
        v_mul_u32_u24 v9, 72, v2
        s_mul_i32 s11, s9, 288
        v_add3_u32 v8, v8, v9, s11
        v_mul_u32_u24 v9, 0x48000, v2
        v_lshl_add_u32 v9, v3, 4, v9
        s_mul_i32 s11, s9, 0x120000
        s_lshl_b32 s12, s5, 9
        s_lshl_b32 s13, s8, 8
        s_add_u32 s11, s11, s12
        s_add_u32 s11, s11, s13
        s_and_b32 s12, s5, 3
        s_lshl_b32 s12, s12, 6
        s_lshr_b32 s13, s5, 2
        s_lshl_b32 s13, s13, 3
        s_add_u32 s14, s12, s13
        s_mov_b64 s[90:91], 0
        """)
        self.srds()
        a("""
        s_or_b32 s88, s88, 1
        s_mov_b64 s[92:93], s[88:89]
        global_load_dwordx4 v[16:19], v8, s[16:17] nt
        global_load_dwordx4 v[20:23], v8, s[16:17] offset:16 nt
        global_load_dwordx4 v[24:27], v8, s[16:17] offset:32 nt
        global_load_dwordx4 v[28:31], v8, s[16:17] offset:48 nt
        global_load_dwordx2 v[32:33], v8, s[16:17] offset:64 nt
        """)
        if "nononce" not in self.abl: a("s_atomic_cmpswap_x2 s[88:91], s[40:41], s14 glc")
        if "earlybar" in self.abl: a("s_barrier")
        if "linwq" in self.abl:
            a("v_lshlrev_b32 v9, 4, v1")
            a("s_and_b32 s11, s2, 127")
            a("s_mul_i32 s11, s11, 36864")
        for t in range(36):
            a(f"buffer_load_dwordx4 v[{64+4*t}:{67+4*t}], v9, s[60:63], s11 offen nt")
            if t < 35:
                a("s_addk_i32 s11, 0x2000" if "linwq" not in self.abl else "s_addk_i32 s11, 0x400")
        if "earlybar" not in self.abl: a("s_barrier")
        self.stamp(1)
        a(f"""
        s_lshl_b32 s12, s5, 4
        s_lshl_b32 s13, s4, 3
        s_add_u32 s12, s12, s13
        s_add_u32 s12, s12, s6
        s_lshl_b32 s12, s12, 11
        v_lshl_add_u32 v48, v1, 4, s12
        v_lshrrev_b32 v8, 5, v1
        v_lshlrev_b32 v49, 13, v8
        v_and_b32 v9, 31, v1
        v_lshl_add_u32 v49, v9, 4, v49
        s_lshl_b32 s13, s5, 15
        s_lshl_b32 s14, s4, 9
        s_add_u32 s13, s13, s14
        v_add_u32 v49, s13, v49
        v_add_u32 v50, 4096, v49
        v_add_u32 v56, 16384, v49
        v_add_u32 v57, 20480, v49
        v_lshlrev_b32 v51, 8, v8
        v_lshl_add_u32 v51, v3, 4, v51
        v_and_b32 v10, 1, v2
        v_lshl_add_u32 v51, v10, 3, v51
        s_mul_i32 s12, s2, {H1_STRIDE}
        s_add_u32 s12, s12, {H1_OFF}
        v_lshl_add_u32 v52, v1, 4, s12
        v_mov_b32 v54, s12
        s_mov_b32 s12, 0x01000100
        s_mov_b32 s13, 0x03020302
        s_waitcnt vmcnt(36)
        """)
        for t in range(36):
            if t % 6 == 0:
                self.site("h")
            A = 40 + 4 * (t % 2)
            a(f"v_perm_b32 v34, v{16+t//2}, v{16+t//2}, s{12+(t%2)}")
            for r in range(4):
                a(f"v_and_b32 v{A+r}, v34, v{4+r}")
            a(f"s_waitcnt vmcnt({35-t})")
            a("s_nop 0")
            c = "0" if t == 0 else "v[36:39]"
            a(f"v_mfma_f32_16x16x32_bf16 v[36:39], v[{A}:{A+3}], v[{64+4*t}:{67+4*t}], {c}")
        self.site("h")
        a("""
        s_waitcnt lgkmcnt(0)
        s_cmp_eq_u64 s[88:89], 0
        s_cselect_b64 s[88:89], s[92:93], s[88:89]
        v_mov_b32 v40, s88
        v_mov_b32 v41, s89
        v_mov_b32 v34, s88
        v_mov_b32 v35, s89
        s_nop 0
        """)
        if "noqx" in self.abl: a("s_branch L_pqd")
        a("""
        global_store_dwordx4 v48, v[34:37], s[42:43] sc1
        global_store_dwordx4 v48, v[38:41], s[42:43] offset:1024 sc1
        """)
        self.stamp(2)
        self.spin_init(11)
        a("L_pq:")
        for br in range(2):
            for qd in range(4):
                for hf in range(2):
                    r = 64 + 32 * br + 8 * qd + 4 * hf
                    va = (49, 50, 56, 57)[br * 2 + (qd >> 1)]
                    a(f"global_load_dwordx4 v[{r}:{r+3}], v{va}, s[42:43] offset:{(qd&1)*2048 + hf*1024} sc1")
        a("s_mov_b64 s[14:15], 0")
        self.site("h")
        for i in range(16):
            r = 64 + 4 * i + (0 if i % 2 == 0 else 2)
            a(f"s_waitcnt vmcnt({15-i})")
            a(f"v_cmp_ne_u64 vcc, s[88:89], v[{r}:{r+1}]")
            a("s_or_b64 s[14:15], s[14:15], vcc")
        if "nopoll" in self.abl: a("s_branch L_pqd")
        a(f"""
        s_cbranch_scc0 L_pqd
        s_sleep {self.pollsleep}
        """)
        self.spin_check(11, "L_pq")
        a("L_pqd:")
        self.site("h")
        self.stamp(3)
        for br in range(2):
            r = 64 + 32 * br + 2
            for k in range(4):
                a(f"v_add_f32 v{r+k}, v{r+k}, v{r+8+k}")
                a(f"v_add_f32 v{r+16+k}, v{r+16+k}, v{r+24+k}")
            for k in range(4):
                a(f"v_add_f32 v{r+k}, v{r+k}, v{r+16+k}")
            a(f"v_cvt_pk_bf16_f32 v{r}, v{r}, v{r+1}")
            a(f"v_cvt_pk_bf16_f32 v{r+1}, v{r+2}, v{r+3}")
            a(f"ds_write_b64 v51, v[{r}:{r+1}] offset:{L_Q + br*512}")
        a(f"""
        v_mov_b32 v59, {L_CNT}
        v_mov_b32 v8, 1
        s_waitcnt lgkmcnt(0)
        ds_write_b32 v59, v8 offset:4
        """)
        self.stamp(4)
        self.rend("h")
        self.gap("t")
        self.site("t")
        a(f"""
        v_lshrrev_b32 v8, 3, v3
        v_lshl_add_u32 v54, v8, 3, v54
        v_lshlrev_b32 v57, 4, v1
        v_lshlrev_b32 v58, 3, v1
        v_mov_b32 v59, {L_CNT}
        s_mov_b32 s68, 0
        """)
        a("""
        s_and_b32 s12, s2, 0xc0
        s_lshl_b32 s13, s6, 3
        s_and_b32 s14, s7, 7
        s_or_b32 s12, s12, s13
        s_or_b32 s69, s12, s14
        """)
        self.hop2_setup()
        self.spin_init(11)
        a("L_wa:")
        a("""
        ds_read_b32 v8, v59
        s_waitcnt lgkmcnt(0)
        v_cmp_ne_u32 vcc, 52, v8
        s_cbranch_vccz L_comb
        s_sleep 8
        """)
        self.spin_check(11, "L_wa")
        a("L_comb:")
        self.site("t")
        for s in range(4):
            a(f"ds_read_b64 v[{16+2*s}:{17+2*s}], v58 offset:{L_ML + s*512}")
        for s in range(4):
            a(f"ds_read_b128 v[{24+4*s}:{27+4*s}], v57 offset:{L_ACC + s*1024}")
        a("""
        s_waitcnt lgkmcnt(4)
        v_max3_f32 v40, v16, v18, v20
        v_max_f32 v40, v40, v22
        v_sub_f32 v16, v16, v40
        v_sub_f32 v18, v18, v40
        v_sub_f32 v20, v20, v40
        v_sub_f32 v22, v22, v40
        v_exp_f32 v16, v16
        v_exp_f32 v18, v18
        v_exp_f32 v20, v20
        v_exp_f32 v22, v22
        s_waitcnt lgkmcnt(0)
        """)
        for k in range(4):
            a(f"v_mul_f32 v{24+k}, v{24+k}, v16")
        for s in range(1, 4):
            for k in range(4):
                a(f"v_fmac_f32 v{24+k}, v{24+4*s+k}, v{16+2*s}")
        a("v_mul_f32 v41, v17, v16")
        for k in range(4):
            a(f"v_min_u32 v{24+k}, -2, v{24+k}")
        a("""
        global_store_dwordx4 v52, v[24:27], s[42:43] sc1
        v_fmac_f32 v41, v19, v18
        v_fmac_f32 v41, v21, v20
        v_fmac_f32 v41, v23, v22
        v_min_u32 v40, -2, v40
        v_mov_b32 v42, v41
        s_nop 1
        v_permlane32_swap_b32 v42, v41
        v_add_f32 v41, v41, v42
        v_mov_b32 v42, v41
        s_nop 1
        v_permlane16_swap_b32 v42, v41
        v_add_f32 v41, v41, v42
        v_min_u32 v41, -2, v41
        global_store_dwordx2 v54, v[40:41], s[42:43] offset:1024 sc1
        s_cmp_lg_u32 s68, 0
        s_cbranch_scc1 L_hop2
        s_mov_b32 s68, 1
        """)
        self.stamp(5)
        a(f"""
        v_add_u32 v52, {256*H1_STRIDE}, v52
        v_add_u32 v54, {256*H1_STRIDE}, v54
        v_add_u32 v57, 4096, v57
        v_add_u32 v58, 2048, v58
        """)
        self.all_flags("h0")
        a("""
        v_mov_b32 v8, 2
        ds_write_b32 v59, v8 offset:4
        s_waitcnt lgkmcnt(0)
        s_barrier
        s_branch L_comb
        """)

    def hop2_setup(self):
        a = self.a
        a(f"""
        s_lshl_b32 s12, s69, 4
        s_add_u32 s12, s12, {P2_OFF}
        v_mul_u32_u24 v60, {P2_STRIDE}, v1
        v_add_u32 v60, s12, v60
        v_add_u32 v61, {64*P2_STRIDE}, v60
        v_add_u32 v62, {128*P2_STRIDE}, v60
        v_add_u32 v63, {192*P2_STRIDE}, v60
        s_lshl_b32 s12, s69, 3
        v_lshl_add_u32 v46, v2, 1, s12
        """)

    def hop2(self):
        a = self.a
        a("L_hop2:")
        self.stamp(6)
        if "notail" in self.abl: a("s_branch L_fin")
        a("s_barrier")
        self.spin_init(11)
        a("L_p2:")
        self.site("t")
        for k in range(4):
            a(f"global_load_dwordx4 v[{64+4*k}:{67+4*k}], v{60+k}, s[42:43] sc1")
        a("s_waitcnt vmcnt(0)")
        a("v_max3_u32 v8, v64, v65, v66")
        a("v_max3_u32 v9, v67, v68, v69")
        a("v_max3_u32 v10, v70, v71, v72")
        a("v_max3_u32 v8, v8, v73, v74")
        a("v_max3_u32 v9, v9, v75, v76")
        a("v_max3_u32 v10, v10, v77, v78")
        a("v_max3_u32 v8, v8, v9, v79")
        a("v_max_u32 v8, v8, v10")
        a("v_cmp_eq_u32 vcc, -1, v8")
        a("s_cbranch_vccz L_p2d")
        a("s_mov_b64 exec, vcc")
        if self.p2sleep: a(f"s_sleep {self.p2sleep}")
        self.spin_check(11, "L_p2")
        a("L_p2d:")
        a("s_mov_b64 exec, -1")
        for k in range(4):
            a(f"v_add_f32 v{64+k}, v{64+k}, v{68+k}")
        for k in range(4):
            a(f"v_add_f32 v{72+k}, v{72+k}, v{76+k}")
        for k in range(4):
            a(f"v_add_f32 v{64+k}, v{64+k}, v{72+k}")
        a("""
        s_nop 0
        v_permlane32_swap_b32 v64, v66
        v_permlane32_swap_b32 v65, v67
        v_add_f32 v64, v64, v66
        v_add_f32 v65, v65, v67
        s_nop 1
        v_permlane16_swap_b32 v64, v65
        v_add_f32 v64, v64, v65
        s_nop 1
        v_add_f32_dpp v64, v64, v64 quad_perm:[1,0,3,2] row_mask:0xf bank_mask:0xf
        s_nop 1
        v_add_f32_dpp v64, v64, v64 quad_perm:[2,3,0,1] row_mask:0xf bank_mask:0xf
        s_nop 1
        v_add_f32_dpp v64, v64, v64 row_half_mirror row_mask:0xf bank_mask:0xf
        s_nop 1
        v_add_f32_dpp v64, v64, v64 row_mirror row_mask:0xf bank_mask:0xf
        s_mov_b32 s12, 0x00010001
        s_mov_b32 s13, 0x00010001
        v_cvt_pk_bf16_f32 v64, v64, v64
        s_mov_b64 exec, s[12:13]
        global_store_short v46, v64, s[38:39]
        """)
        self.stamp(7)
        a("s_branch L_fin" if self.stamps else "s_endpgm")
        self.rend("t")

    def h2(self):
        a = self.a
        a("L_h2:")
        a(f"""
        v_mov_b32 v8, {L_CNT}
        v_mov_b32 v9, 0
        v_mov_b32 v48, -1
        v_mov_b32 v49, -1
        v_mov_b32 v50, -1
        v_mov_b32 v51, -1
        s_mul_i32 s12, s2, {H1_STRIDE}
        s_add_u32 s12, s12, {H1_OFF}
        v_lshl_add_u32 v52, v1, 4, s12
        v_add_u32 v53, {256*H1_STRIDE}, v52
        v_mov_b32 v54, s12
        v_add_u32 v55, {256*H1_STRIDE}, v54
        s_mul_i32 s12, s2, {P2_STRIDE}
        s_add_u32 s12, s12, {P2_OFF}
        v_lshl_add_u32 v56, v1, 4, s12
        """)
        self.srds()
        a("ds_write_b32 v8, v9")
        a("ds_write_b32 v8, v9 offset:4")
        a("s_waitcnt lgkmcnt(0)")
        a("s_barrier")
        self.run_chain("h")
        if "noclear" not in self.abl: a("""
        global_store_dwordx4 v52, v[48:51], s[42:43] sc1
        global_store_dwordx4 v53, v[48:51], s[42:43] sc1
        global_store_dwordx4 v54, v[48:51], s[42:43] offset:1024 sc1
        global_store_dwordx4 v55, v[48:51], s[42:43] offset:1024 sc1
        global_store_dwordx4 v56, v[48:51], s[42:43] sc1
        global_store_dwordx4 v56, v[48:51], s[42:43] offset:1024 sc1
        global_store_dwordx4 v56, v[48:51], s[42:43] offset:2048 sc1
        global_store_dwordx4 v56, v[48:51], s[42:43] offset:3072 sc1
        global_store_dwordx4 v56, v[48:51], s[42:43] offset:3584 sc1
        """)
        a(f"""
        s_lshl_b32 s12, s7, 7
        s_add_u32 s12, s12, {CNT_OFF}
        v_mov_b32 v57, s12
        s_cmp_lg_u32 s6, 0
        s_cbranch_scc1 L_nocnt
        global_store_dword v57, v9, s[42:43] sc1
        L_nocnt:
        """)
        a("s_add_u32 s69, s2, 256")
        self.hop2_setup()
        a("""
        s_and_b32 s13, s2, 3
        s_lshl_b32 s13, s13, 6
        s_add_u32 s13, s13, 32
        s_mov_b32 s12, 1
        s_waitcnt vmcnt(0)
        s_atomic_add s12, s[40:41], s13
        """)
        self.stamp(1)
        a("""
        v_mov_b32 v9, 16
        s_mov_b64 exec, 1
        ds_add_u32 v8, v9
        s_mov_b64 exec, -1
        s_waitcnt lgkmcnt(0)
        """)
        self.run_chain("t")
        self.run_chain("s2")
        a("s_cmp_ge_u32 s2, 32")
        a("s_cbranch_scc1 L_fin")
        a("s_barrier")
        a("s_branch L_hop2")

    def h1(self):
        a = self.a
        a("L_h1:")
        a("""
        v_and_b32 v8, 31, v1
        v_mul_u32_u24 v8, 36, v8
        v_lshrrev_b32 v9, 5, v1
        v_mul_u32_u24 v10, 1152, v9
        v_add_u32 v10, v10, v8
        """)
        self.srds()
        a("""
        global_load_dwordx4 v[16:19], v10, s[16:17] nt
        global_load_dwordx4 v[20:23], v10, s[16:17] offset:16 nt
        global_load_dword v24, v10, s[16:17] offset:32 nt
        global_load_dwordx4 v[28:31], v8, s[36:37] nt
        global_load_dwordx4 v[32:35], v8, s[36:37] offset:16 nt
        global_load_dword v36, v8, s[36:37] offset:32 nt
        v_mov_b32 v40, 0
        v_mov_b32 v41, 0
        """)
        a("s_barrier")
        a("s_waitcnt vmcnt(0)")
        for k in range(9):
            x, w = 16 + k, 28 + k
            a(f"""
            v_lshlrev_b32 v42, 16, v{x}
            v_and_b32 v43, 0xffff0000, v{x}
            v_lshlrev_b32 v44, 16, v{w}
            v_and_b32 v45, 0xffff0000, v{w}
            v_mul_f32 v42, v42, v44
            v_mul_f32 v43, v43, v45
            v_cvt_pk_bf16_f32 v42, v42, v43
            v_and_b32 v43, 0xffff0000, v42
            v_lshlrev_b32 v42, 16, v42
            v_add_f32 v41, v41, v43
            v_add_f32 v40, v40, v42
            """)
        a(f"""
        v_add_f32 v40, v40, v41
        s_nop 1
        v_add_f32_dpp v40, v40, v40 quad_perm:[1,0,3,2] row_mask:0xf bank_mask:0xf
        s_nop 1
        v_add_f32_dpp v40, v40, v40 quad_perm:[2,3,0,1] row_mask:0xf bank_mask:0xf
        s_nop 1
        v_add_f32_dpp v40, v40, v40 row_half_mirror row_mask:0xf bank_mask:0xf
        s_nop 1
        v_add_f32_dpp v40, v40, v40 row_mirror row_mask:0xf bank_mask:0xf
        s_nop 0
        v_mov_b32 v41, v40
        s_nop 1
        v_permlane16_swap_b32 v41, v40
        v_add_f32 v40, v40, v41
        v_cvt_pk_bf16_f32 v40, v40, v40
        v_lshlrev_b32 v40, 16, v40
        v_mul_f32 v40, 0x{f32bits(-math.log2(math.e)):08x}, v40
        v_exp_f32 v40, v40
        s_nop 0
        v_add_f32 v40, 1.0, v40
        v_rcp_f32 v40, v40
        s_nop 0
        v_cvt_pk_bf16_f32 v40, v40, v40
        v_lshlrev_b32 v40, 16, v40
        v_sub_f32 v41, 1.0, v40
        v_cvt_pk_bf16_f32 v41, v41, v41
        v_lshlrev_b32 v41, 16, v41
        s_cmp_eq_u32 s4, 0
        s_cselect_b64 s[12:13], 0, -1
        v_lshlrev_b32 v9, 2, v9
        v_cndmask_b32 v40, v40, v41, s[12:13]
        ds_write_b32 v9, v40 offset:{L_F}
        v_mov_b32 v8, {L_CNT}
        v_mov_b32 v9, 32
        s_waitcnt lgkmcnt(0)
        s_mov_b64 exec, 1
        ds_add_u32 v8, v9
        s_mov_b64 exec, -1
        s_mov_b32 s15, 4
        """)
        self.run_chain("s1")
        self.wo_setup()
        a("s_mov_b32 s12, 0x00ff00ff")
        a("s_mov_b32 s13, 0x00ff00ff")
        a("s_mov_b64 exec, s[12:13]")
        if "noh1wo" not in self.abl: self.wo_loads()
        a("s_mov_b64 exec, -1")
        a("s_branch L_barx")

    def wo_setup(self):
        a = self.a
        a(f"""
        v_mul_u32_u24 v48, 2304, v2
        v_lshl_add_u32 v48, v3, 4, v48
        s_lshl_b32 s12, s5, 8
        s_lshl_b32 s13, s6, 5
        s_add_u32 s12, s12, s13
        s_mul_i32 s70, s12, 1152
        s_lshl_b32 s12, s15, 8
        s_add_u32 s70, s70, s12
        v_lshrrev_b32 v53, 3, v3
        v_and_b32 v54, 7, v1
        v_lshl_add_u32 v54, v53, 7, v54
        v_mul_u32_u24 v54, {H1_STRIDE}, v54
        s_lshl_b32 s12, s4, 8
        s_lshl_b32 s13, s5, 3
        s_add_u32 s12, s12, s13
        s_mul_i32 s12, s12, {H1_STRIDE}
        s_add_u32 s12, s12, {H1_OFF}
        s_lshl_b32 s13, s8, 3
        s_add_u32 s13, s13, s12
        v_add_u32 v50, s13, v54
        s_lshl_b32 s13, s9, 8
        s_add_u32 s12, s12, s13
        s_lshl_b32 s13, s8, 7
        s_add_u32 s12, s12, s13
        v_lshl_add_u32 v49, v2, 5, v54
        v_add_u32 v49, s12, v49
        v_lshlrev_b32 v52, 2, v53
        v_lshrrev_b32 v53, 1, v2
        v_mul_u32_u24 v53, 2304, v53
        v_lshl_add_u32 v53, v3, 5, v53
        v_and_b32 v54, 1, v2
        v_lshl_add_u32 v53, v54, 4, v53
        s_mul_i32 s12, s2, {P2_STRIDE}
        s_lshl_b32 s13, s15, 9
        s_add_u32 s12, s12, s13
        s_add_u32 s12, s12, {P2_OFF}
        v_add_u32 v51, s12, v53
        """)

    def wo_loads(self):
        a = self.a
        for r in range(4):
            for u in range(2):
                t = u * 4 + r
                a(f"buffer_load_dwordx4 v[{64+4*t}:{67+4*t}], v48, s[64:67], s70 offen offset:{u*1152} nt")
            if r < 3:
                a(f"s_addk_i32 s70, {8*1152}")

    def wo_phase(self):
        a = self.a
        a("L_barx:")
        a("s_barrier")
        if "notail" in self.abl:
            self.stamp(5)
            a("s_waitcnt vmcnt(0)")
            self.stamp(6)
            a("s_branch L_fin")
        a(f"ds_read_b32 v52, v52 offset:{L_F}")
        self.stamp(5)
        self.spin_init(11)
        a("L_p1:")
        self.site("s2")
        a("""
        global_load_dwordx2 v[104:105], v50, s[42:43] offset:1024 sc1
        global_load_dwordx4 v[96:99], v49, s[42:43] sc1
        global_load_dwordx4 v[100:103], v49, s[42:43] offset:16 sc1
        s_waitcnt vmcnt(0)
        v_max3_u32 v8, v96, v97, v98
        v_max3_u32 v9, v99, v100, v101
        v_max3_u32 v8, v8, v102, v103
        v_max3_u32 v9, v9, v104, v105
        v_max_u32 v8, v8, v9
        v_cmp_eq_u32 vcc, -1, v8
        s_cbranch_vccz L_p1d
        s_mov_b64 exec, vcc
        """)
        if self.p1sleep: a(f"s_sleep {self.p1sleep}")
        self.spin_check(11, "L_p1")
        a("L_p1d:")
        a("s_mov_b64 exec, -1")
        self.site("s2")
        self.stamp(6)
        D1 = "quad_perm:[1,0,3,2] row_mask:0xf bank_mask:0xf"
        D2 = "quad_perm:[2,3,0,1] row_mask:0xf bank_mask:0xf"
        D3 = "row_half_mirror row_mask:0xf bank_mask:0xf"
        a(f"""
        v_max_f32_dpp v8, v104, v104 {D1}
        s_nop 1
        v_max_f32_dpp v8, v8, v8 {D2}
        s_nop 1
        v_max_f32_dpp v8, v8, v8 {D3}
        v_sub_f32 v8, v104, v8
        v_exp_f32 v8, v8
        s_waitcnt lgkmcnt(0)
        v_mul_f32 v105, v105, v8
        """)
        for t in range(8):
            a(f"v_mul_f32 v{96+t}, v{96+t}, v8")
        for D in (D1, D2, D3):
            a(f"v_add_f32_dpp v105, v105, v105 {D}")
            if D is D3:
                a("v_rcp_f32 v105, v105")
            for t in range(8):
                a(f"v_add_f32_dpp v{96+t}, v{96+t}, v{96+t} {D}")
        self.site("s2")
        a("v_mul_f32 v105, v105, v52")
        for t in range(8):
            a(f"v_mul_f32 v{96+t}, v{96+t}, v105")
        for t in range(8):
            A = 24 + 4 * (t % 2)
            a(f"v_cvt_pk_bf16_f32 v{96+t}, v{96+t}, v{96+t}")
            for r in range(4):
                a(f"v_and_b32 v{A+r}, v{96+t}, v{4+r}")
            a("s_nop 1")
            c = "0" if t == 0 else "v[20:23]"
            a(f"v_mfma_f32_16x16x32_bf16 v[20:23], v[{A}:{A+3}], v[{64+4*t}:{67+4*t}], {c}")
        a("""
        s_mov_b32 s12, 0x00ff00ff
        s_mov_b32 s13, 0x00ff00ff
        s_cmp_eq_u32 s15, 4
        s_cselect_b64 s[12:13], s[12:13], -1
        s_nop 4
        v_min_u32 v20, -2, v20
        v_min_u32 v21, -2, v21
        v_min_u32 v22, -2, v22
        v_min_u32 v23, -2, v23
        s_mov_b64 exec, s[12:13]
        global_store_dwordx4 v51, v[20:23], s[42:43] sc1
        s_barrier
        """)
        self.stamp(7)
        a("s_branch L_fin" if self.stamps else "s_endpgm")
        self.rend("s2")

    def kloads(self, r, srd, so):
        for i in range(4):
            self.a(f"buffer_load_dwordx4 v[{r+4*i}:{r+4*i+3}], v8, s[{srd}:{srd+3}], s{so} offen offset:{i*64} nt")
    def vloads(self, r, srd, so):
        for i in range(4):
            self.a(f"buffer_load_dwordx4 v[{r+4*i}:{r+4*i+3}], v9, s[{srd}:{srd+3}], s{so} offen offset:{i*256} nt")

    def qk(self, r):
        for i in range(4):
            c = "0" if i == 0 else "v[16:19]"
            self.a(f"v_mfma_f32_16x16x32_bf16 v[16:19], v[{r+4*i}:{r+4*i+3}], v[{32+4*i}:{35+4*i}], {c}")

    def softmax(self):
        self.a("""
        v_max3_f32 v13, v16, v17, v18
        v_max3_f32 v13, v13, v19, v12
        v_mov_b32 v14, v13
        s_nop 1
        v_permlane32_swap_b32 v14, v13
        v_max_f32 v13, v13, v14
        v_mov_b32 v14, v13
        s_nop 1
        v_permlane16_swap_b32 v14, v13
        v_max_f32 v12, v13, v14
        v_mul_f32 v13, s10, v12
        v_sub_f32 v15, v10, v13
        v_fma_f32 v16, v16, s10, -v13
        v_fma_f32 v17, v17, s10, -v13
        v_fma_f32 v18, v18, s10, -v13
        v_fma_f32 v19, v19, s10, -v13
        v_exp_f32 v15, v15
        v_exp_f32 v16, v16
        v_exp_f32 v17, v17
        v_exp_f32 v18, v18
        v_exp_f32 v19, v19
        v_mov_b32 v10, v13
        v_mul_f32 v20, v20, v15
        v_mul_f32 v21, v21, v15
        v_mul_f32 v22, v22, v15
        v_mul_f32 v23, v23, v15
        v_fma_f32 v11, v11, v15, v16
        v_add_f32 v13, v17, v18
        v_add_f32 v11, v11, v19
        v_cvt_pk_bf16_f32 v16, v16, v16
        v_cvt_pk_bf16_f32 v17, v17, v17
        v_cvt_pk_bf16_f32 v18, v18, v18
        v_cvt_pk_bf16_f32 v19, v19, v19
        v_add_f32 v11, v11, v13
        """)
    def pv(self, r, wait):
        a = self.a
        for k in range(4): a(f"v_and_b32 v{24+k}, v16, v{4+k}")
        for k in range(4): a(f"v_and_b32 v{28+k}, v17, v{4+k}")
        a(f"s_waitcnt vmcnt({wait})")
        a(f"v_mfma_f32_16x16x32_bf16 v[20:23], v[{r}:{r+3}], v[24:27], v[20:23]")
        a(f"v_mfma_f32_16x16x32_bf16 v[20:23], v[{r+4}:{r+7}], v[28:31], v[20:23]")
        for k in range(4): a(f"v_and_b32 v{24+k}, v18, v{4+k}")
        for k in range(4): a(f"v_and_b32 v{28+k}, v19, v{4+k}")
        a(f"v_mfma_f32_16x16x32_bf16 v[20:23], v[{r+8}:{r+11}], v[24:27], v[20:23]")
        a("s_nop 0")
        a(f"v_mfma_f32_16x16x32_bf16 v[20:23], v[{r+12}:{r+15}], v[28:31], v[20:23]")

    def state_init(self):
        self.a(f"""
        v_mov_b32 v12, 0x{f32bits(-1e30):08x}
        v_mov_b32 v10, 0x{f32bits(-1e29):08x}
        v_mov_b32 v11, 0
        v_mov_b32 v20, 0
        v_mov_b32 v21, 0
        v_mov_b32 v22, 0
        v_mov_b32 v23, 0
        """)

    def lds_wait(self, tag, val, sleep):
        a = self.a
        self.spin_init(11)
        a(f"L_lw_{tag}:")
        a(f"""
        ds_read_b32 v13, v58 offset:4
        s_waitcnt lgkmcnt(0)
        v_cmp_gt_u32 vcc, {val}, v13
        s_cbranch_vccz L_lwd_{tag}
        s_sleep {sleep}
        """)
        self.spin_check(11, f"L_lw_{tag}")
        a(f"L_lwd_{tag}:")

    def stream(self):
        a = self.a
        NS, ND, RB = self.NS, self.ND, self.RB
        RS = 32 * 4096
        slot = lambda n: 256 - 32 * NS + 32 * (n % NS)
        a("L_stream:")
        a(f"""
        s_sub_u32 s15, s3, 3
        v_lshlrev_b32 v8, 8, v3
        v_lshl_add_u32 v8, v2, 4, v8
        v_lshlrev_b32 v9, 10, v2
        v_lshl_add_u32 v9, v3, 4, v9
        s_lshl_b32 s12, s6, 2
        s_add_u32 s12, s12, s15
        s_lshl_b32 s12, s12, 12
        s_lshl_b32 s13, s7, 21
        s_add_u32 s68, s12, s13
        s_add_u32 s69, s68, {(RB-1)*RS}
        s_add_u32 s95, s13, {RB*RS}
        s_add_u32 s12, s68, 0x180000
        s_sub_u32 s68, s68, {RS}
        """)
        self.srds()
        a("s_barrier")
        Q = []
        def wait_for(kind, n):
            i = Q.index((kind, n))
            a(f"s_waitcnt vmcnt({4 * (len(Q) - 1 - i)})")
        def issueK(n):
            if n < 4:
                if n: a(f"s_add_u32 s12, s12, {RS}")
                self.kloads(slot(n), 44, 12)
            else:
                a(f"s_add_u32 s68, s68, {RS}")
                self.kloads(slot(n), 52, 68)
            Q.append(("K", n))
        def issueV(n):
            if n < 4: self.vloads(slot(n) + 16, 48, 12)
            else: self.vloads(slot(n) + 16, 56, 68)
            Q.append(("V", n))
        for n in range(NS):
            for f in (issueK, issueV):
                if "pace8" in self.abl:
                    if f is issueK and 4 * len(Q) + 8 > self.pace:
                        a(f"s_waitcnt vmcnt({self.pace - 8})")
                elif 4 * len(Q) + 4 > self.pace:
                    a(f"s_waitcnt vmcnt({self.pace - 4})")
                f(n)
            if n == 0:
                a(f"""
                v_lshrrev_b32 v55, 3, v3
                v_lshlrev_b32 v55, 8, v55
                v_lshl_add_u32 v55, v2, 4, v55
                s_lshl_b32 s13, s15, 10
                v_lshl_add_u32 v56, v1, 4, s13
                s_lshl_b32 s13, s15, 9
                v_lshl_add_u32 v57, v1, 3, s13
                v_mov_b32 v58, {L_CNT}
                v_mov_b32 v59, 1
                s_mov_b32 s71, {ND}
                s_mov_b32 s14, 0
                s_lshl_b32 s92, s7, 7
                s_add_u32 s92, s92, {CNT_OFF}
                """)
                self.state_init()
        self.stamp(1)
        if "nowaitq" not in self.abl: self.lds_wait("q", 1, 1)
        self.stamp(2)
        for i in range(4):
            a(f"ds_read_b128 v[{32+4*i}:{35+4*i}], v55 offset:{L_Q + 64*i}")
        a("s_waitcnt lgkmcnt(0)")
        NU = 2 * NS - ND
        assert NU + ND - 4 <= RB
        for n in range(NU):
            self.site("s1")
            refill = n < NS
            wait_for("K", n)
            self.qk(slot(n))
            pad = 8
            if refill:
                issueK(n + NS); pad -= 5
            if n == 3:
                for i in range(4):
                    a(f"ds_read_b128 v[{32+4*i}:{35+4*i}], v55 offset:{L_Q + 512 + 64*i}")
                pad -= 4
            if pad > 0: a(f"s_nop {pad-1}")
            self.softmax()
            i = Q.index(("V", n))
            self.pv(slot(n) + 16, 4 * (len(Q) - 1 - i))
            if refill: issueV(n + NS)
            if n == 3:
                a(f"""
                s_nop 7
                ds_write_b64 v57, v[10:11] offset:{L_ML}
                ds_write_b128 v56, v[20:23] offset:{L_ACC}
                s_waitcnt lgkmcnt(0)
                s_mov_b64 exec, 1
                ds_add_u32 v58, v59
                s_mov_b64 exec, -1
                """)
                self.state_init()
                self.stamp(3)
            if n == NS:
                self.wo_setup()
        dyn = RB < 16
        NDYN = (16 - RB) * 32
        if dyn:
            self.lds_wait("c", 2, 4)
            if NU + ND - 4 == RB:
                a("s_mov_b32 s94, 1")
                a("s_atomic_add s94, s[42:43], s92 glc")
        W = 8 * ND - 4
        self.rend("s1")
        self.gap("s2")
        a("L_loop:")
        for b in range(ND):
            r = slot(NU + b)
            self.site("s2")
            a(f"s_waitcnt vmcnt({W})")
            self.qk(r)
            a(f"""
            s_cmp_lt_u32 s68, s69
            s_cbranch_scc0 L_dyn{b}
            s_add_u32 s68, s68, {RS}
            s_mov_b32 s93, s68
            """)
            if dyn:
                a(f"""
                s_cmp_lt_u32 s68, s69
                s_cbranch_scc1 L_kl{b}
                L_tk{b}:
                s_mov_b32 s94, 1
                s_atomic_add s94, s[42:43], s92 glc
                """)
            a(f"L_kl{b}:")
            self.kloads(r, 52, 93)
            a(f"L_sm{b}:")
            self.softmax()
            self.pv(r + 16, W)
            a(f"""
            s_cmp_eq_u32 s14, 1
            s_cbranch_scc1 L_nov{b}
            """)
            self.vloads(r + 16, 56, 93)
            a(f"""
            L_nov{b}:
            s_mov_b32 s14, 0
            s_cmp_eq_u32 s71, 0
            s_cbranch_scc1 L_done
            """)
        a("s_branch L_loop")
        for b in range(ND):
            a(f"L_dyn{b}:")
            self.site("s2")
            if dyn:
                a(f"""
                s_waitcnt lgkmcnt(0)
                s_lshl_b32 s93, s94, 12
                s_add_u32 s93, s93, s95
                s_cmp_lt_u32 s94, {NDYN}
                s_cbranch_scc1 L_tk{b}
                """)
            a(f"""
            s_mov_b32 s93, 0x80000000
            s_sub_u32 s71, s71, 1
            s_cmp_lg_u32 s71, {ND-1}
            s_cbranch_scc1 L_kl{b}
            s_mov_b32 s14, 1
            """)
            self.wo_loads()
            a(f"s_branch L_sm{b}")
        a("L_done:")
        self.site("s2")
        self.stamp(4)
        a(f"""
        s_nop 5
        ds_write_b64 v57, v[10:11] offset:{L_ML + 2048}
        ds_write_b128 v56, v[20:23] offset:{L_ACC + 4096}
        s_waitcnt lgkmcnt(0)
        """)

    def fin(self):
        a = self.a
        a("L_fin:")
        if self.probe:
            k, F = self.probe
            a(f"""
            s_cmp_lg_u32 s3, 0
            s_cbranch_scc1 L_end
            s_waitcnt lgkmcnt(0)
            s_sub_u32 s12, s{72+2*k}, s88
            s_max_i32 s12, s12, 0
            s_mul_i32 s12, s12, {F}
            s_min_u32 s12, s12, 100000
            L_probe:
            s_memrealtime s[14:15]
            s_waitcnt lgkmcnt(0)
            s_sub_u32 s13, s14, s86
            s_cmp_lt_u32 s13, s12
            s_cbranch_scc1 L_probe
            """)
        elif self.stamps:
            a(f"""
            s_mov_b64 exec, 1
            s_lshl_b32 s12, s2, 3
            s_add_u32 s12, s12, s3
            s_lshl_b32 s12, s12, 6
            s_add_u32 s12, s12, {STAMP_OFF}
            v_mov_b32 v1, s12
            s_waitcnt lgkmcnt(0)
            """)
            for k in range(8):
                a(f"v_mov_b32 v2, s{72+2*k}")
                a(f"v_mov_b32 v3, s{73+2*k}")
                a(f"global_store_dwordx2 v1, v[2:3], s[42:43] offset:{8*k}")
                a("s_nop 1")
        a("L_end:")
        a("s_endpgm")

    def build(self):
        L = self.L
        L.append(HEADER.rstrip("\n"))
        L.append(f"; @launch grid=(256,1,1) block=(448,1,1) lds={LDS_BYTES}")
        L.append('.amdgcn_target "amdgcn-amd-amdhsa--gfx950"')
        L.append(".text")
        L.append(f".globl {KNAME}")
        L.append(".p2align 8")
        L.append(f".type {KNAME},@function")
        L.append(f"{KNAME}:")
        if self.stamps:
            for k in range(8):
                self.a(f"s_mov_b64 s[{72+2*k}:{73+2*k}], 0")
        self.prologue()
        self.h0()
        self.hop2()
        self.h2()
        self.h1()
        self.stream()
        self.wo_phase()
        self.fin()
        L.append('.section .rodata,"a"')
        L.append(".p2align 6")
        L.append(f".amdhsa_kernel {KNAME}")
        L.append("  .amdhsa_next_free_vgpr 256")
        L.append("  .amdhsa_next_free_sgpr 96")
        L.append("  .amdhsa_accum_offset 256")
        L.append("  .amdhsa_group_segment_fixed_size 0")
        L.append("  .amdhsa_kernarg_size 112")
        L.append("  .amdhsa_user_sgpr_count 2")
        L.append("  .amdhsa_user_sgpr_kernarg_segment_ptr 1")
        L.append("  .amdhsa_system_sgpr_workgroup_id_x 1")
        L.append(".end_amdhsa_kernel")
        return "\n".join(L) + "\n"

def build_with_pads(kw, limit=960):
    import subprocess, tempfile, os
    g = Gen(**kw)
    txt = g.build()
    with tempfile.TemporaryDirectory() as d:
        open(d + "/a.s", "w").write(txt)
        subprocess.check_call(["clang", "-x", "assembler", "-target", "amdgcn-amd-amdhsa", "-mcpu=gfx950", "-c", d + "/a.s", "-o", d + "/a.o"])
        nm = subprocess.check_output(["llvm-objdump", "-t", d + "/a.o"], text=True)
    addr = {}
    for line in nm.splitlines():
        p = line.split()
        if len(p) >= 4 and p[-1].startswith("L_"): addr[p[-1]] = int(p[0], 16)
    pads = {}
    for chain in sorted(set(g.sites)):
        ss = [(addr[f"L_site{i}"], i) for i, c in enumerate(g.sites) if c == chain]
        ss.sort()
        end = addr[f"L_rend_{chain}"]
        chosen = []
        while end > ss[0][0]:
            cands = [x for x in ss if end - limit <= x[0] < end]
            assert cands, (chain, hex(end))
            chosen.append(cands[0][1])
            end = cands[0][0]
        pads[chain] = chosen
    kw2 = dict(kw); kw2["pads"] = pads
    return Gen(**kw2).build(), pads

if __name__ == "__main__":
    out = sys.argv[1]
    kw = json.loads(sys.argv[2]) if len(sys.argv) > 2 else {}
    if kw.pop("usepads", True):
        txt, pads = build_with_pads(kw)
        print(out, "pads", pads)
    else:
        txt = Gen(**kw).build()
    open(out, "w").write(txt)
```
